```python
import torch

def _softmax(x, axis=-1):
    return torch.softmax(x, dim=axis)
def _gelu(x):
    return torch.nn.functional.gelu(x, approximate="tanh")
def _silu(x):
    return torch.nn.functional.silu(x)
def _sigmoid(x):
    return torch.sigmoid(x)
def _layernorm(x, axis=-1, eps=1e-5):
    m = x.mean(dim=axis, keepdim=True)
    v = x.var(dim=axis, keepdim=True, unbiased=False)
    return (x - m) / torch.sqrt(v + eps)
def _scatter_add(tgt, idx, src, axis=0):
    return tgt.clone().index_add_(axis, idx, src)
def _segment_sum(src, seg, n):
    out = torch.zeros((n,) + src.shape[1:], dtype=src.dtype)
    return out.index_add_(0, seg, src)
def _pad(x, pw):
    flat = tuple(v for pair in reversed(pw) for v in pair)
    return torch.nn.functional.pad(x, flat)

kernel_name = 'interleave_layers__sliding_local_dilated__moe_arch_mod__prompt'

def setup_inputs():

    _w = (lambda a: (lambda t: t.to(torch.bfloat16) if t.is_floating_point() else t)(torch.as_tensor(a)))
    def _A_setup():
        B, S, D = 1, 2048, 512
        return {
            "x": _w((lambda *s: torch.randn(*s, dtype=torch.bfloat16) * 0.05)(B, S, D)),
            "wqkv": _w((lambda *s: torch.randn(*s, dtype=torch.bfloat16) * 0.05)(D, 3 * D)),
            "wo": _w((lambda *s: torch.randn(*s, dtype=torch.bfloat16) * 0.05)(D, D)),
        }
    _A_in = _A_setup()

    def _B_setup():
        B, S, D, F, C = 1, 2048, 512, 1376, 1
        return {
            "x": _w((lambda *s: torch.randn(*s, dtype=torch.bfloat16) * 0.05)(B, S, D)),
            "w_r": _w((lambda *s: torch.randn(*s, dtype=torch.bfloat16) * 0.05)(D)),
            "w_gate": _w((lambda *s: torch.randn(*s, dtype=torch.bfloat16) * 0.05)(D, F)),
            "w_up": _w((lambda *s: torch.randn(*s, dtype=torch.bfloat16) * 0.05)(D, F)),
            "w_down": _w((lambda *s: torch.randn(*s, dtype=torch.bfloat16) * 0.05)(F, D)),
        }
    _B_in = _B_setup()

    return {
        "A_x": _A_in["x"],
        "A_wqkv": _A_in["wqkv"],
        "A_wo": _A_in["wo"],
        "B_x": _B_in["x"],
        "B_w_r": _B_in["w_r"],
        "B_w_gate": _B_in["w_gate"],
        "B_w_up": _B_in["w_up"],
        "B_w_down": _B_in["w_down"],
    }

def reference(A_x, A_wqkv, A_wo, B_x, B_w_r, B_w_gate, B_w_up, B_w_down):
    def _A_ref(x, wqkv, wo):
        B, S, D = x.shape
        H = 32; Dh = D // H
        W, dil = 8, 2
        qkv = (lambda x, *d: x.permute(*d))((x @ wqkv).reshape(B, S, 3, H, Dh), 2, 0, 3, 1, 4)
        q, k, v = qkv[0], qkv[1], qkv[2]
        scale = Dh ** -0.5
        pos = torch.arange(S)
        off = torch.arange(W) * dil
        idx = pos[:, None] - off[None, :]
        mask = idx >= 0
        idx_c = torch.where(mask, idx, 0).reshape(-1)
        kg = k[:, :, idx_c, :].reshape(B, H, S, W, Dh)
        vg = v[:, :, idx_c, :].reshape(B, H, S, W, Dh)
        logits = torch.einsum("bhsd,bhswd->bhsw", q, kg) * scale
        logits = torch.where(mask[None, None, :, :], logits, -1e9)
        attn = _softmax(logits, axis=-1)
        o = torch.einsum("bhsw,bhswd->bhsd", attn, vg)
        return (lambda x, *d: x.permute(*d))(o, 0, 2, 1, 3).reshape(B, S, D) @ wo

    def _B_ref(x, w_r, w_gate, w_up, w_down):
        B, S, D = x.shape
        C = 1
        r = x @ w_r
        idx = torch.argsort(-r, axis=-1)[:, :C]
        idx_e = (lambda x, n, axis: torch.repeat_interleave(x, n, dim=axis))(idx.reshape(B, C, 1), D, axis=2)
        x_sel = (lambda x, i, axis: torch.take_along_dim(x, i, dim=axis))(x, idx_e, axis=1)
        g = _silu(x_sel @ w_gate)
        u = x_sel @ w_up
        y = (g * u) @ w_down
        r_sel = _sigmoid((lambda x, i, axis: torch.take_along_dim(x, i, dim=axis))(r, idx, axis=1))
        y = y * r_sel.reshape(B, C, 1)
        b_off = (torch.arange(B) * S).reshape(B, 1)
        flat_idx = (idx + b_off).reshape(B * C)
        zero = (x * 0.0).reshape(B * S, D)
        upd = _scatter_add(zero, flat_idx, y.reshape(B * C, D), axis=0)
        return x + upd.reshape(B, S, D)

    x = A_x
    x = x + _A_ref(_layernorm(x, axis=-1), A_wqkv, A_wo)
    x = x + _B_ref(_layernorm(x, axis=-1), B_w_r, B_w_gate, B_w_up, B_w_down)
    x = x + _A_ref(_layernorm(x, axis=-1), A_wqkv, A_wo)
    x = x + _B_ref(_layernorm(x, axis=-1), B_w_r, B_w_gate, B_w_up, B_w_down)
    return x
```

```python
import re

REG = re.compile(r'^(-|\|)?(?:abs\()?([vas])(?:(\d+)|\[(\d+):(\d+)\])\)?\|?$')
TRANS = ('v_exp_f32', 'v_log_f32', 'v_rcp_f32', 'v_rsq_f32', 'v_sqrt_f32', 'v_sin_f32', 'v_cos_f32')

def regs_of(tok):
    tok = tok.strip()
    if tok == 'vcc': return {('s', 'vcc')}
    if tok in ('vcc_lo', 'vcc_hi'): return {('s', 'vcc')}
    if tok in ('exec', 'exec_lo', 'exec_hi'): return {('s', 'exec')}
    if tok == 'm0': return {('s', 'm0')}
    m = REG.match(tok)
    if not m: return set()
    k = m.group(2)
    if m.group(3) is not None: return {(k, int(m.group(3)))}
    return {(k, i) for i in range(int(m.group(4)), int(m.group(5)) + 1)}

class Ins:
    def __init__(self, text):
        self.text = text
        t = text.split(';')[0].strip()
        self.label = t.endswith(':')
        self.op = t.split()[0] if t else ''
        self.w = set(); self.r = set(); self.rc = set(); self.rab = set(); self.data = set()
        if self.label or not t or self.op.startswith('.'):
            self.kind = 'none'; return
        rest = t[len(self.op):].strip()
        ops = []; depth = 0; cur = ''
        for ch in rest:
            if ch in '[(': depth += 1
            if ch in '])': depth -= 1
            if ch == ',' and depth == 0: ops.append(cur.strip()); cur = ''
            else: cur += ch
        if cur.strip(): ops.append(cur.strip())
        mods = ''
        if ops:
            parts = ops[-1].split(None, 1)
            ops[-1] = parts[0]; mods = parts[1] if len(parts) > 1 else ''
        self.ops = ops; self.mods = mods
        op = self.op
        R = [regs_of(o) for o in ops]
        U = lambda l: set().union(*l) if l else set()
        if op.startswith('v_mfma'):
            self.kind = 'mfma'; self.w = R[0]; self.rab = R[1] | R[2]; self.rc = R[3]; self.r = self.rab | self.rc
        elif op.startswith('v_permlane'):
            self.kind = 'valu'; self.w = R[0] | R[1]; self.r = R[0] | R[1]
        elif op.startswith('v_'):
            self.kind = 'valu'
            nd = 2 if ('_co_' in op or op.startswith('v_div_scale') or op.startswith('v_mad_u64')) else 1
            self.w = U(R[:nd]); self.r = U(R[nd:])
            if op.startswith(('v_fmac', 'v_dot2c', 'v_writelane')) or '_dpp' in op: self.r |= R[0]
        elif op.startswith('ds_'):
            self.kind = 'ds'
            if op.startswith(('ds_read', 'ds_bpermute', 'ds_permute', 'ds_swizzle')): self.w = R[0]; self.r = U(R[1:])
            else: self.r = U(R)
        elif op.startswith(('global_', 'buffer_')):
            self.kind = 'vmem'
            lds = ' lds' in (' ' + mods) or '_lds_' in op
            self.ldsdma = lds
            if lds: self.r = U(R) | {('s', 'm0')}
            elif '_load_' in op: self.w = R[0]; self.r = U(R[1:])
            else:
                self.r = U(R)
                if ops and ('x3' in op or 'x4' in op):
                    self.data = R[0] if op.startswith('buffer_') else R[1]
        elif op.startswith('s_'):
            self.kind = 'salu'
            if op.startswith(('s_cmp', 's_bitcmp', 's_waitcnt', 's_nop', 's_barrier', 's_branch', 's_cbranch', 's_sleep', 's_setprio', 's_endpgm')):
                self.r = U(R)
            else:
                self.w = R[0] if R else set(); self.r = U(R[1:])
                if 'saveexec' in op: self.w |= {('s', 'exec')}
        else:
            raise ValueError('unknown op ' + text)
    def states(self):
        if self.kind == 'none': return 0
        if self.op == 's_nop': return int(self.ops[0], 0) + 1
        return 1

def need(p, c):
    n = 0
    vw = {x for x in p.w if x[0] in 'va'}
    sw = {x for x in p.w if x[0] == 's'}
    if p.kind == 'valu':
        if c.kind == 'mfma' and vw & c.r: n = max(n, 2)
        if c.kind == 'valu':
            if c.op.startswith('v_permlane') and vw & c.r: n = max(n, 2)
            if '_dpp' in c.op and vw & c.r: n = max(n, 2)
            if c.op.startswith(('v_readlane', 'v_readfirstlane')) and vw & c.r: n = max(n, 1)
            if p.op.startswith(TRANS) and vw & c.r: n = max(n, 1)
            if sw & c.r: n = max(n, 4 if c.op.startswith(('v_readlane', 'v_writelane')) else 2)
        if c.kind == 'vmem' and sw & c.r: n = max(n, 5)
        if c.kind == 'salu' and sw & c.r: n = max(n, 1)
    if p.kind == 'mfma':
        if c.kind == 'mfma':
            if vw & c.rab: n = max(n, 8)
            if vw & c.rc and (c.rc != vw or c.op != p.op): n = max(n, 6)
            if vw & c.w and not (vw & c.rc): n = max(n, 6)
        elif c.kind in ('valu', 'ds', 'vmem'):
            if vw & (c.r | c.w): n = max(n, 8)
            if c.kind == 'valu' and p.rc & c.w: n = max(n, 3)
    if p.kind == 'salu' and ('s', 'm0') in p.w and c.kind == 'vmem' and getattr(c, 'ldsdma', False): n = max(n, 1)
    if p.kind == 'vmem' and p.data and p.data & c.w: n = max(n, 2)
    return n

def worst(p):
    if p.kind == 'mfma': return 8
    if p.kind == 'valu': return 5 if any(x[0] == 's' for x in p.w) else 2
    if p.kind == 'vmem' and p.data: return 2
    if p.kind == 'salu' and ('s', 'm0') in p.w: return 1
    return 0

class Asm:
    def __init__(self):
        self.ins = []; self.vmq = []; self.lgq = []; self.uid = 0; self.track = True
    def __call__(self, text, tag=None):
        for line in text.split('\n'):
            line = line.strip()
            if not line: continue
            i = Ins(line); self.ins.append(i)
            if self.track:
                if i.kind == 'vmem': self.vmq.append(tag)
                elif i.kind == 'ds': self.lgq.append(tag)
    def label(self, name): self(name + ':')
    def newl(self, base): self.uid += 1; return f'L_{base}_{self.uid}'
    def _cnt(self, q, tag):
        tags = tag if isinstance(tag, (list, tuple, set)) else [tag]
        idx = [i for i, t in enumerate(q) if t in tags]
        if not idx: return None
        return len(q) - 1 - idx[-1]
    def wait(self, vm=None, lg=None):
        parts = []
        if vm is not None:
            n = 0 if vm == 'all' else self._cnt(self.vmq, vm)
            if n is not None:
                parts.append(f'vmcnt({min(n, 63)})'); self.vmq = self.vmq[len(self.vmq) - n:] if n else []
        if lg is not None:
            n = 0 if lg == 'all' else self._cnt(self.lgq, lg)
            if n is not None:
                parts.append(f'lgkmcnt({min(n, 15)})'); self.lgq = self.lgq[len(self.lgq) - n:] if n else []
        if parts: self('s_waitcnt ' + ' '.join(parts))
    def finish(self):
        out = []; nops = 0
        for c in self.ins:
            if c.kind != 'none':
                isbr = c.op.startswith(('s_branch', 's_cbranch', 's_setpc', 's_swappc'))
                dist = 0; pad = 0
                for p in reversed(out):
                    if dist >= 8: break
                    if p.kind == 'none': continue
                    n = need(p, c)
                    if isbr: n = max(n, worst(p) - 1)
                    pad = max(pad, n - dist)
                    dist += p.states()
                if pad > 0:
                    out.append(Ins(f's_nop {pad - 1}')); nops += 1
            out.append(c)
        self.nops = nops
        return '\n'.join(('' if i.label else '    ') + i.text for i in out)
```

```python
import sys
from asmlib import Asm

NAME = 'interleave_layers__sliding_local_dilated__moe_arch_mod__prompt'
DEBUG = '--debug' in sys.argv
OUT = [a for a in sys.argv[1:] if not a.startswith('--')]
OUT = OUT[0] if OUT else f'cdna_kernels/{NAME}.s'

TA, TB = 0x10000, 0x290000
ST = 0x510000; ST_L = 32 * 10240
FL = 0x5B0000
RG = 0x5C0000; RG_L = 32 * 256
CA = 0x5C4000; CA_L = 32 * 1024
YP = 0x5D4000; YP_L = 44 * 1024
DBGS = 0x600000
WS_BYTES = 0x800000
IMG = 0; RING = 81920; OWN = 147456; MISC = 157696
SQ = MISC; VM = MISC + 1280; VC = MISC + 1600; AMX = MISC + 1920; FS = MISC + 1984
ROW = MISC + 2048; HB = ROW; YF = MISC + 3072; RED = MISC + 5120; T0P = RED
WDL = RING; WUL = RING; WGL = RING + 32768
NEG = 0xF149F2CA
SPIN = 200000

a = Asm()
sW, sM, sG, sP, sJ = 's3', 's4', 's5', 's6', 's7'
rX, rW, rWO, rWS, rWG, rWU, rWD, rOUT = ('s[8:11]', 's[12:15]', 's[16:19]', 's[20:23]', 's[24:27]', 's[28:31]', 's[32:35]', 's[36:39]')
pDBG, pWR = 's[40:41]', 's[42:43]'
mDIAG, mQ1, mQ2 = 's[44:45]', 's[46:47]', 's[48:49]'
sSW = 's50'
sBR, sBL, sBS, sBN = 's51', 's52', 's53', 's54'
sWR, sWI = 's55', 's56'
sCNT = 's57'
sT = [f's{i}' for i in range(58, 70)]
mT = 's[70:71]'
STAMP0 = 72
_vn = [0]
def V(n=1, al=1):
    while _vn[0] % al: _vn[0] += 1
    b = _vn[0]; _vn[0] += n
    assert _vn[0] <= 256, 'out of VGPRs'
    return b
def v(i, n=1): return f'v{i}' if n == 1 else f'v[{i}:{i+n-1}]'
def ag(i, n=1): return f'a{i}' if n == 1 else f'a[{i}:{i+n-1}]'
vLane = V(); vQ = V(); vG = V()
vL16 = V(); vL16b = V()
vDmaA = V(); vDmaB = V()
vPubG = V(); vPubL = V()
vSQ = V(); vVS = V()
vOwnR = V()
vStP = V(); vStG = V(); vStW = V(); vStV = V()
vFlag = V()
vMc = V(2, 2)
vBc = V(4, 2); vBp = V(4, 2); vBp1 = V(4, 2)
vCsQ = V(4, 2); vCsK = V(4, 2); vCsV = V(2, 2)
vLf = V(8, 2)
vOnes = V(4, 2)
vRes = V(20, 2)
vWd = V(32, 2)
vQf = V(10, 2); vKf = V(10, 2); vVf = V(12, 2)
vFr = V(52, 2)
vAcc = V(60, 2)
assert vAcc == vFr + 52
vT = V(256 - _vn[0])
NT = 256 - vT
def acc(tt, part): return vAcc + (tt * 3 + part) * 4
def wfrag(ks, part): return (ks * 3 + part) * 4
def wofrag(ks): return 192 + ks * 4
TILE_ORD = [1, 2, 3, 4, 0]

nstamp = [0]
def stamp(name):
    if not DEBUG: return
    i = nstamp[0]; nstamp[0] += 1
    assert STAMP0 + 2 * i + 1 <= 99
    a(f's_memtime s[{STAMP0+2*i}:{STAMP0+2*i+1}]')
    stamp.names.append(name)
stamp.names = []

def srd(dst, lo, hi, nbytes):
    d = int(dst[2:dst.index(':')])
    a(f's_mov_b32 s{d}, {lo}\ns_and_b32 s{d+1}, {hi}, 0xffff\ns_mov_b32 s{d+2}, {nbytes}\ns_mov_b32 s{d+3}, 0x20000')

def interleave(mf, fill, per=2):
    for pre, text in mf:
        if pre: pre()
        a(text)
        for _ in range(per):
            if fill:
                t, tag = fill.pop(0); a(t, tag)
def drain(fill):
    while fill:
        t, tag = fill.pop(0); a(t, tag)

def poll_begin():
    l = a.newl('poll'); a(f's_mov_b32 {sCNT}, 0'); a.label(l); return l
def poll_end(l):
    a(f's_add_u32 {sCNT}, {sCNT}, 1\ns_cmp_gt_u32 {sCNT}, {SPIN}\ns_cbranch_scc1 L_end\ns_cbranch_vccnz {l}')

a(f's_cmp_ge_u32 s2, 256\ns_cbranch_scc1 L_end')
stamp('start')
a('s_load_dwordx16 s[52:67], s[0:1], 0')
a('s_load_dwordx4 s[68:71], s[0:1], 64')
a('s_load_dwordx2 s[44:45], s[0:1], 80')
if DEBUG: a('s_memrealtime s[46:47]')
t0, t1, t2, t3, t4, t5, t6, t7 = [vFr + i for i in range(8)]
a(f'''v_lshrrev_b32 {v(t0)}, 6, v0
v_and_b32 {v(vLane)}, 63, v0
s_and_b32 {sG}, s2, 7
v_readfirstlane_b32 {sW}, {v(t0)}
s_lshl_b32 {sG}, {sG}, 2
s_lshr_b32 {sM}, s2, 6
s_add_u32 {sG}, {sG}, {sM}
s_lshr_b32 {sM}, s2, 3
s_and_b32 {sM}, {sM}, 7
v_and_b32 {v(vQ)}, 15, {v(vLane)}
v_lshrrev_b32 {v(vG)}, 4, {v(vLane)}
v_lshlrev_b32 {v(vL16)}, 4, {v(vLane)}''')
vXs0, vXs1, vWs0, vWs1, vOs0, vOs1, vXr0, vXr1, vXr2, vXr3, vTrW, vTrO, vSt0, vSt1, vSt2, vSt3, vStz = [vWd + i for i in range(17)]
a(f'''v_lshrrev_b32 {v(t0)}, 3, {v(vLane)}
v_and_b32 {v(t1)}, 7, {v(vLane)}
s_and_b32 s8, {sW}, 1
s_lshl_b32 s9, s8, 2
v_xor_b32 {v(t2)}, {v(t1)}, {v(vG)}
v_xor_b32 {v(t2)}, s9, {v(t2)}
v_lshlrev_b32 {v(t2)}, 4, {v(t2)}
v_lshl_add_u32 {v(vXs0)}, {v(t0)}, 11, {v(t2)}
v_xor_b32 {v(vXs1)}, 64, {v(vXs0)}''')
a(f'''v_and_b32 {v(t2)}, 1, {v(vG)}
v_lshlrev_b32 {v(t2)}, 1, {v(t2)}
v_xor_b32 {v(t2)}, {v(t1)}, {v(t2)}
v_lshlrev_b32 {v(t2)}, 4, {v(t2)}
s_lshl_b32 s9, {sM}, 7
v_add_u32 {v(t2)}, s9, {v(t2)}
s_lshl_b32 s9, {sW}, 4
v_add_u32 {v(t3)}, s9, {v(t0)}
v_mul_u32_u24 {v(t4)}, 3072, {v(t3)}
v_add_u32 {v(vWs0)}, {v(t4)}, {v(t2)}
v_xor_b32 {v(t5)}, 64, {v(t2)}
v_add_u32 {v(t4)}, {8*3072}, {v(t4)}
v_add_u32 {v(vWs1)}, {v(t4)}, {v(t5)}
v_lshl_add_u32 {v(vOs0)}, {v(t3)}, 10, {v(t2)}
v_lshl_add_u32 {v(vOs1)}, {v(t3)}, 10, {v(t5)}
v_add_u32 {v(vOs1)}, {8*1024 - 1024}, {v(vOs1)}''')
a('s_waitcnt lgkmcnt(0)')
srd(rX, 's52', 's53', 0x200000)
srd(rW, 's54', 's55', 0x180000)
srd(rWS, 's44', 's45', WS_BYTES)
sXrow, sXl, sXo = sT[8], sT[9], sT[10]
srd(rWO, 's56', 's57', 0x80000)
srd(rWG, 's62', 's63', 512 * 2752)
srd(rWU, 's64', 's65', 512 * 2752)
srd(rWD, 's66', 's67', 1376 * 1024)
srd(rOUT, 's68', 's69', 0x200000)
a(f's_mov_b64 {pDBG}, s[70:71]\ns_mov_b64 {pWR}, s[60:61]')
if DEBUG: a(f's_mov_b32 s100, s46')

vm1 = vFr + 8
a(f'''v_mov_b32 {v(vm1)}, -1
v_mov_b32 {v(vm1+1)}, -1
v_mov_b32 {v(vm1+2)}, -1
v_mov_b32 {v(vm1+3)}, -1
s_mul_i32 {sT[0]}, {sG}, 10240
s_mul_i32 {sT[1]}, {sM}, 1280
s_add_u32 {sT[0]}, {sT[0]}, {sT[1]}
s_add_u32 {sT[0]}, {sT[0]}, {ST}''')
a(f'''s_add_u32 {sT[1]}, {sG}, 32
s_cmp_lt_u32 {sG}, 11
s_cselect_b32 {sT[1]}, {sT[1]}, -1
s_cmp_eq_u32 {sM}, 5
s_cselect_b32 {sJ}, {sT[1]}, -1
s_cmp_eq_u32 {sM}, 1
s_cselect_b32 {sJ}, {sG}, {sJ}''')
lc2, lc3, lcd = a.newl('c2'), a.newl('c3'), a.newl('cd')
a.track = False
a(f'''s_cmp_ge_u32 {sW}, 2
s_cbranch_scc1 {lc2}
s_mul_i32 {sT[1]}, {sW}, {ST_L + 256}
s_add_u32 {sT[1]}, {sT[1]}, {sT[0]}
buffer_store_dwordx4 {v(vm1,4)}, {v(vL16)}, {rWS}, {sT[1]} offen sc1
s_branch {lcd}''')
a.label(lc2)
a(f'''s_cmp_eq_u32 {sW}, 3
s_cbranch_scc1 {lc3}''')
a(f'''s_add_u32 {sT[1]}, {sT[0]}, 1024
v_add_u32 {v(t2)}, {sT[1]}, {v(vL16)}
s_lshl_b32 {sT[1]}, {sG}, 10
s_lshl_b32 {sT[2]}, {sM}, 7
s_add_u32 {sT[1]}, {sT[1]}, {sT[2]}
s_add_u32 {sT[1]}, {sT[1]}, {CA}
v_and_b32 {v(t3)}, 1, {v(t0)}
v_mul_u32_u24 {v(t3)}, {CA_L}, {v(t3)}
v_lshl_add_u32 {v(t3)}, {v(t1)}, 4, {v(t3)}
v_add_u32 {v(t3)}, {sT[1]}, {v(t3)}
v_cmp_eq_u32 vcc, 1, {v(vG)}
v_cndmask_b32 {v(t2)}, {v(t2)}, {v(t3)}, vcc
s_lshl_b32 {sT[1]}, {sG}, 11
s_add_u32 {sT[1]}, {sT[1]}, {FL - 4 * 256}
v_lshlrev_b32 {v(t3)}, 8, {v(t0)}
v_lshl_add_u32 {v(t3)}, {v(t1)}, 4, {v(t3)}
v_add_u32 {v(t3)}, {sT[1]}, {v(t3)}
v_cmp_lt_u32 vcc, 1, {v(vG)}
v_cndmask_b32 {v(t2)}, {v(t2)}, {v(t3)}, vcc
s_cmp_eq_u32 {sM}, 0
s_cselect_b32 exec_hi, -1, 0
buffer_store_dwordx4 {v(vm1,4)}, {v(t2)}, {rWS}, 0 offen sc1
s_mov_b64 exec, -1
s_cbranch_scc0 {lcd}
s_lshl_b32 {sT[1]}, {sG}, 8
s_add_u32 {sT[1]}, {sT[1]}, {RG}
v_mul_u32_u24 {v(t3)}, {RG_L}, {v(vLane)}
s_mov_b64 exec, 3
buffer_store_dwordx4 {v(vm1,4)}, {v(t3)}, {rWS}, {sT[1]} offen sc1
s_mov_b64 exec, -1
s_branch {lcd}''')
a.label(lc3)
a(f'''s_cmp_lt_i32 {sJ}, 0
s_cbranch_scc1 {lcd}
s_lshl_b32 {sT[1]}, {sJ}, 10
s_add_u32 {sT[1]}, {sT[1]}, {YP}
buffer_store_dwordx4 {v(vm1,4)}, {v(vL16)}, {rWS}, {sT[1]} offen sc1
s_add_u32 {sT[1]}, {sT[1]}, {YP_L}
buffer_store_dwordx4 {v(vm1,4)}, {v(vL16)}, {rWS}, {sT[1]} offen sc1''')
a.label(lcd)
a.track = True

a(f'''s_and_b32 {sXrow}, {sG}, 15
s_lshl_b32 {sXrow}, {sXrow}, 6
s_and_b32 {sT[1]}, {sW}, 1
s_mul_i32 {sT[2]}, {sT[1]}, 40
s_add_u32 {sXrow}, {sXrow}, {sT[2]}
s_sub_i32 {sXrow}, {sXrow}, 16
s_lshr_b32 {sT[2]}, {sW}, 1
s_mul_i32 {sXl}, {sT[2]}, 10240
s_mul_i32 {sT[3]}, {sT[1]}, 5120
s_add_u32 {sXl}, {sXl}, {sT[3]}
s_add_u32 {sXo}, {sT[2]}, {sM}
s_cmp_eq_u32 {sT[1]}, 0
s_cselect_b32 s70, 0xffffff00, -1
s_mov_b32 s71, -1
s_lshr_b32 {sT[4]}, {sG}, 4
s_lshl_b32 {sT[4]}, {sT[4]}, 10''')
sXr = [sT[3], sT[5], sT[6], sT[7], sT[11]]
for j in range(5):
    a(f'''s_add_i32 {sT[2]}, {sXrow}, {8*j}
s_max_i32 {sT[2]}, {sT[2]}, 0
s_lshl_b32 {sT[2]}, {sT[2]}, 11''')
    a(f's_add_u32 {sXr[j]}, {sT[2]}, {sT[4]}')
def x_issue(aa):
    f = [(f's_add_u32 {sT[1]}, {sXo}, {2*aa}', None), (f's_and_b32 {sT[1]}, {sT[1]}, 7', None), (f's_lshl_b32 {sT[1]}, {sT[1]}, 7', None)]
    for j in range(5):
        f.append((f's_add_u32 m0, {sXl}, {aa*20480 + j*1024}', None))
        f.append((f's_add_u32 {sT[2]}, {sT[1]}, {sXr[j]}', None))
        if j == 0: f.append((f's_mov_b64 exec, {mT}', None))
        f.append((f'buffer_load_dwordx4 {v(vXs1 if j & 1 else vXs0)}, {rX}, {sT[2]} offen lds', f'X{aa}'))
        if j == 0: f.append(('s_mov_b64 exec, -1', None))
    return f
sWl = sXrow
a(f's_mul_i32 {sWl}, {sW}, 6144\ns_add_u32 {sWl}, {sWl}, {RING}')
def w_issue(c):
    f = [(f's_add_u32 {sT[1]}, {sM}, {c}', None), (f's_and_b32 {sT[1]}, {sT[1]}, 7', None), (f's_mul_i32 {sT[1]}, {sT[1]}, {64*3072}', None)]
    for h in range(2):
        f.append((f's_add_u32 m0, {sWl}, {(c % 3) * 24576 + h * 3072}', None))
        for part in range(3):
            f.append((f'buffer_load_dwordx4 {v(vWs1 if h else vWs0)}, {rW}, {sT[1]} offen offset:{part*1024} lds', f'W{c}'))
    return f
def wo_issue(c):
    return [(f's_add_u32 {sT[1]}, {sM}, {c}', None), (f's_and_b32 {sT[1]}, {sT[1]}, 7', None), (f's_lshl_b32 {sT[1]}, {sT[1]}, 16', None),
            (f's_lshl_b32 {sT[2]}, {sW}, 11', None), (f's_add_u32 m0, {sT[2]}, {c*8192}', None),
            (f'buffer_load_dwordx4 {v(vOs0)}, {rWO}, {sT[1]} offen lds', 'WO'),
            (f'buffer_load_dwordx4 {v(vOs1)}, {rWO}, {sT[1]} offen offset:1024 lds', 'WO')]
drain(x_issue(0)); drain(x_issue(1))
vWr = vAcc
a(f'''s_lshl_b32 {sT[1]}, {sM}, 7
v_lshl_add_u32 {v(t2)}, {v(vG)}, 4, {sT[1]}''')
a(f'global_load_dwordx4 {v(vLf,4)}, {v(t2)}, {pWR}', 'WR')
a(f'global_load_dwordx4 {v(vLf+4,4)}, {v(t2)}, {pWR} offset:64', 'WR')
a(f'global_load_dwordx4 {v(vWr,4)}, {v(vL16)}, {pWR}', 'WR')

for i in range(4): a(f'v_mov_b32 {v(vOnes+i)}, 0x3f803f80')
a(f'''v_mul_u32_u24 {v(t2)}, 10240, {v(t0)}
v_lshl_add_u32 {v(t2)}, {v(t1)}, 4, {v(t2)}''')
a(f'ds_write_b128 {v(t2)}, {v(vOnes,4)}', 'ones')
a(f'''v_add_u32 {v(vL16b)}, 65536, {v(vL16)}
v_lshrrev_b32 {v(t2)}, 1, {v(vQ)}
v_xor_b32 {v(t3)}, {v(vG)}, {v(t2)}
v_lshlrev_b32 {v(t3)}, 4, {v(t3)}
v_lshl_add_u32 {v(vXr0)}, {v(vQ)}, 7, {v(t3)}
v_xor_b32 {v(vXr1)}, 64, {v(vXr0)}
v_add_u32 {v(vXr2)}, 40960, {v(vXr0)}
v_add_u32 {v(vXr3)}, 40960, {v(vXr1)}
s_add_u32 {sT[1]}, {sW}, 1
s_lshl_b32 {sT[1]}, {sT[1]}, 11
v_add_u32 {v(vSt0)}, {sT[1]}, {v(vXr0)}
v_add_u32 {v(vSt1)}, {sT[1]}, {v(vXr1)}
v_add_u32 {v(vSt2)}, {sT[1]}, {v(vXr2)}
v_add_u32 {v(vSt3)}, {sT[1]}, {v(vXr3)}
s_lshr_b32 {sT[1]}, {sW}, 1
s_mul_i32 {sT[1]}, {sT[1]}, 10240
s_and_b32 {sT[2]}, {sW}, 1
s_lshl_b32 {sT[2]}, {sT[2]}, 6
v_xor_b32 {v(vStz)}, {sT[2]}, {v(vXr0)}
v_add_u32 {v(vStz)}, {sT[1]}, {v(vStz)}''')
a(f'''v_lshrrev_b32 {v(t2)}, 2, {v(vQ)}
v_lshrrev_b32 {v(t3)}, 3, {v(vQ)}
v_and_b32 {v(t4)}, 1, {v(vG)}
v_lshl_or_b32 {v(t3)}, {v(t4)}, 1, {v(t3)}
v_xor_b32 {v(t3)}, {sW}, {v(t3)}
v_lshlrev_b32 {v(t3)}, 5, {v(t3)}
v_lshl_add_u32 {v(t3)}, {v(t2)}, 7, {v(t3)}
v_and_b32 {v(t4)}, 3, {v(vLane)}
v_lshl_add_u32 {v(t3)}, {v(t4)}, 3, {v(t3)}
v_mul_u32_u24 {v(t4)}, 3072, {v(vG)}
v_add_u32 {v(t4)}, {RING}, {v(t4)}
v_add_u32 {v(vTrW)}, {v(t4)}, {v(t3)}
v_lshl_add_u32 {v(vTrO)}, {v(vG)}, 10, {v(t3)}''')
a(f'''v_cmp_eq_u32 {mDIAG}, {v(t2)}, {v(vG)}
v_and_b32 {v(t3)}, 1, {v(vLane)}
v_cmp_eq_u32 {mQ1}, 1, {v(t3)}
v_and_b32 {v(t3)}, 2, {v(vLane)}
v_cmp_eq_u32 {mQ2}, 2, {v(t3)}''')
a(f'''v_lshlrev_b32 {v(t2)}, 2, {v(vG)}
v_sub_u32 {v(t2)}, {v(vQ)}, {v(t2)}
v_mov_b32 {v(t3)}, {NEG:#x}
s_and_b32 {sT[1]}, {sG}, 15
s_cmp_eq_u32 {sT[1]}, 0
s_cselect_b64 s[0:1], -1, 0''')
for r in range(4):
    a(f'''v_subrev_u32 {v(t4)}, {r}, {v(t2)}
v_cmp_gt_u32 vcc, 8, {v(t4)}
v_cndmask_b32 {v(vBc+r)}, {v(t3)}, 0, vcc
v_cmp_gt_i32 vcc, -8, {v(t4)}
v_cndmask_b32 {v(vBp+r)}, {v(t3)}, 0, vcc
v_cndmask_b32 {v(vBp1+r)}, {v(vBp+r)}, {v(t3)}, s[0:1]
v_cmp_le_i32 vcc, 0, {v(t4)}''')
    if r % 2 == 0: a(f'v_mov_b32 {v(t5)}, 0xffff\nv_cndmask_b32 {v(vMc + r//2)}, 0, {v(t5)}, vcc')
    else: a(f'v_mov_b32 {v(t5)}, 0xffff0000\nv_cndmask_b32 {v(t5)}, 0, {v(t5)}, vcc\nv_or_b32 {v(vMc + r//2)}, {v(vMc + r//2)}, {v(t5)}')
a(f'''s_mul_i32 {sT[1]}, {sG}, 81920
s_lshl_b32 {sT[2]}, {sW}, 1
s_add_u32 {sT[2]}, {sT[2]}, {sM}
s_and_b32 s0, {sT[2]}, 7
s_lshl_b32 s0, s0, 11
s_add_u32 s0, s0, {sT[1]}
v_add_u32 {v(vDmaA)}, s0, {v(vL16)}
s_add_u32 {sT[2]}, {sT[2]}, 1
s_and_b32 s0, {sT[2]}, 7
s_lshl_b32 s0, s0, 11
s_add_u32 s0, s0, {sT[1]}
s_add_u32 s0, s0, {4096 - 2048}
v_add_u32 {v(vDmaB)}, s0, {v(vL16)}
v_add_u32 {v(vDmaA)}, 4096, {v(vDmaA)}''')
a(f'''v_lshrrev_b32 {v(t2)}, 1, {v(vG)}
v_lshlrev_b32 {v(t2)}, 8, {v(t2)}
v_lshl_add_u32 {v(t2)}, {v(vQ)}, 4, {v(t2)}
s_lshl_b32 {sT[2]}, {sW}, 9
v_add_u32 {v(t2)}, {sT[2]}, {v(t2)}
v_and_b32 {v(t3)}, 1, {v(vG)}
v_lshl_add_u32 {v(vPubL)}, {v(t3)}, 11, {v(t2)}
v_add_u32 {v(vPubL)}, {OWN}, {v(vPubL)}
v_lshl_add_u32 {v(vPubG)}, {v(t3)}, 14, {v(t2)}
s_lshl_b32 {sT[2]}, {sM}, 11
s_add_u32 {sT[2]}, {sT[2]}, {sT[1]}
v_add_u32 {v(vPubG)}, {sT[2]}, {v(vPubG)}
v_lshlrev_b32 {v(t2)}, 4, {v(vQ)}
v_add_u32 {v(vSQ)}, {SQ}, {v(t2)}
v_lshlrev_b32 {v(t3)}, 4, {v(vG)}
v_add_u32 {v(vVS)}, {VM}, {v(t3)}
s_add_u32 {sT[2]}, {sW}, 1
s_lshl_b32 s0, {sT[2]}, 11
s_add_u32 s0, s0, {OWN}
v_add_u32 {v(vOwnR)}, s0, {v(vL16)}
s_lshl_b32 s0, {sT[2]}, 8
s_add_u32 s1, s0, {sT[0]}
v_add_u32 {v(vStP)}, s1, {v(t2)}''')
a(f'''v_mov_b32 {v(t3)}, s0
v_cmp_gt_u32 vcc, 2, {v(vG)}
v_cndmask_b32 {v(t3)}, 0, {v(t3)}, vcc
v_add_u32 {v(t3)}, {v(t3)}, {v(t2)}
v_add_u32 {v(vStW)}, {SQ}, {v(t3)}
v_lshrrev_b32 {v(t4)}, 2, {v(t3)}
v_add_u32 {v(vStV)}, {VM}, {v(t4)}
v_and_b32 {v(t4)}, 1, {v(vG)}
v_mul_u32_u24 {v(t4)}, 5120, {v(t4)}
s_mul_i32 s1, {sG}, 10240
s_add_u32 s1, s1, {ST}
v_add3_u32 {v(vStG)}, {v(t3)}, {v(t4)}, s1
v_and_b32 {v(t3)}, 31, {v(vLane)}
v_lshlrev_b32 {v(t3)}, 2, {v(t3)}
s_lshl_b32 s1, {sG}, 11
s_add_u32 s1, s1, {FL}
v_add_u32 {v(vFlag)}, s1, {v(t3)}
v_mov_b32 {v(vVf)}, 0
v_mov_b32 {v(vVf+1)}, 0
s_mov_b32 {sP}, 0''')
stamp('prolog')

sS1, sS2, zS1, zS2 = vQf, vQf + 4, vKf, vKf + 4
for aa in range(4):
    a.wait(vm=f'X{aa}', lg='all')
    a('s_barrier')
    if aa == 0:
        lg_ = a.newl('go')
        a.track = False
        a(f'''s_cmp_eq_u32 {sM}, 0
s_cbranch_scc0 {lg_}
s_cmp_eq_u32 {sW}, 2
s_cbranch_scc0 {lg_}
s_lshl_b32 s0, {sG}, 3
v_mov_b32 {v(vT)}, s0
v_mov_b32 {v(vT+1)}, 1
s_mov_b64 exec, 1
global_store_dword {v(vT)}, {v(vT+1)}, {pDBG} sc1
s_mov_b64 exec, -1''')
        a.label(lg_)
        a.track = True
    for i in range(4):
        base = (vSt0, vSt1, vSt2, vSt3)[(i & 1) + (2 if aa >= 2 else 0)]
        a(f'ds_read_b128 {v(vFr+4*i,4)}, {v(base)} offset:{(2*(aa&1) + (i>>1))*10240}', f'S{i}')
    a(f'ds_read_b128 {v(vFr+16,4)}, {v(vStz)} offset:{aa*20480}', 'S4')
    if aa == 0:
        a(f'''v_lshrrev_b32 {v(vT)}, 1, {v(vG)}
s_lshl_b32 s0, {sW}, 1
v_add_u32 {v(vT)}, s0, {v(vT)}
v_lshrrev_b32 {v(vT+1)}, 1, {v(vQ)}
v_xor_b32 {v(vT)}, {v(vT)}, {v(vT+1)}
v_lshlrev_b32 {v(vT)}, 4, {v(vT)}
v_lshl_add_u32 {v(vT)}, {v(vQ)}, 7, {v(vT)}
v_and_b32 {v(vT+1)}, 1, {v(vG)}
v_lshl_add_u32 {v(vT)}, {v(vT+1)}, 3, {v(vT)}''')
        for tt in range(5):
            a(f'ds_read_b64 {v(vRes+4*tt+2,2)}, {v(vT)} offset:{tt*2048}', 'R')
    fill = x_issue(aa + 2) if aa < 2 else w_issue(aa - 2)
    drain(fill)
    mf = []
    for i in range(5):
        s1, s2 = (sS1, sS2) if i < 4 else (zS1, zS2)
        first = aa == 0 and i in (0, 4)
        fr = v(vFr + 4*i, 4)
        mf.append(((lambda i=i: a.wait(lg=f'S{i}')), f'v_mfma_f32_16x16x32_bf16 {v(s1,4)}, {v(vOnes,4)}, {fr}, {0 if first else v(s1,4)}'))
        mf.append((None, f'v_mfma_f32_16x16x32_bf16 {v(s2,4)}, {fr}, {fr}, {0 if first else v(s2,4)}'))
    interleave(mf, [])
    if aa == 0:
        a.wait(lg='R')
        for tt in range(5):
            b = vRes + 4*tt
            a(f'''v_lshlrev_b32 {v(b)}, 16, {v(b+2)}
v_and_b32 {v(b+1)}, 0xffff0000, {v(b+2)}
v_lshlrev_b32 {v(b+2)}, 16, {v(b+3)}
v_and_b32 {v(b+3)}, 0xffff0000, {v(b+3)}''')
    if aa == 1:
        a.wait(vm='WR')
        for i in range(8): a(f'v_cndmask_b32 {v(vLf+i)}, {v(vOnes)}, {v(vLf+i)}, {mQ1}')
        a(f'v_mfma_f32_16x16x32_bf16 {v(vWr+4,4)}, {v(vOnes,4)}, {v(vWr,4)}, 0')
        for sh in (8, 4, 2, 1):
            a(f'v_add_f32_dpp {v(vWr+4)}, {v(vWr+4)}, {v(vWr+4)} row_ror:{sh} row_mask:0xf bank_mask:0xf')
        a(f'v_readfirstlane_b32 {sSW}, {v(vWr+4)}')
stamp('xdone')

def diag_select(dst, src):
    a(f'''v_cndmask_b32 {v(dst)}, {v(src)}, {v(src+1)}, {mQ1}
v_cndmask_b32 {v(src+2)}, {v(src+2)}, {v(src+3)}, {mQ1}
v_cndmask_b32 {v(dst)}, {v(dst)}, {v(src+2)}, {mQ2}''')
def ln_basic(s1, s2, negm, var, rstd):
    a(f'''v_mul_f32 {v(negm)}, 0xbb000000, {v(s1)}
v_mul_f32 {v(rstd)}, {v(negm)}, {v(negm)}
v_mul_f32 {v(var)}, 0x3b000000, {v(s2)}
v_sub_f32 {v(var)}, {v(var)}, {v(rstd)}
v_max_f32 {v(var)}, 0, {v(var)}
v_add_f32 {v(rstd)}, 0x3727c5ac, {v(var)}
v_rsq_f32 {v(rstd)}, {v(rstd)}''')
diag_select(sS1 + 1, sS2)
diag_select(zS1 + 1, zS2)
ln_basic(sS1, sS1 + 1, vT, vT + 2, vT + 1)
a(f'''s_lshl_b32 s0, {sW}, 7
s_add_u32 s0, s0, {T0P}
v_lshl_add_u32 {v(vT+3)}, {v(vQ)}, 3, s0
s_add_u32 s1, {sW}, 1
s_lshl_b32 s0, s1, 8
v_add_u32 {v(vT+4)}, s0, {v(vSQ)}
s_lshl_b32 s0, s1, 6
s_add_u32 s0, s0, {VM}
v_lshl_add_u32 {v(vT+5)}, {v(vQ)}, 2, s0
s_mov_b64 exec, {mDIAG}''')
a(f'ds_write_b64 {v(vT+3)}, {v(zS1,2)}', 'sw')
a(f'ds_write_b64 {v(vT+4)}, {v(vT,2)}', 'sw')
a(f'ds_write2_b32 {v(vT+5)}, {v(vT)}, {v(vT+1)} offset0:0 offset1:80', 'sw')
a('s_mov_b64 exec, -1')

DEFER = 9
def xread(n, tt):
    c, s = n >> 1, n & 1
    base = (vXr0, vXr1, vXr2, vXr3)[s + (2 if c >= 4 else 0)]
    return (f'ds_read_b128 {v(vFr + (n & 1)*20 + 4*tt, 4)}, {v(base)} offset:{(c & 3)*10240 + tt*2048}', f'x{n}')
def trread(n):
    c, s = n >> 1, n & 1
    return [(f'ds_read_b64_tr_b16 {ag(wfrag(n, part) + 2*hh, 2)}, {v(vTrW)} offset:{(c % 3)*24576 + s*12288 + part*1024 + hh*512}', f'w{n}')
            for part in range(3) for hh in range(2)]
def qkv_mfma(tt, part, ks, fr, first):
    d = v(acc(tt, part), 4); w = ag(wfrag(ks, part), 4)
    A, B = (w, fr) if part < 2 else (fr, w)
    return f'v_mfma_f32_16x16x32_bf16 {d}, {A}, {B}, {0 if first else d}'
fill = []
def stage_w(c):
    def f():
        drain(fill)
        a.wait(vm=f'W{c}', lg='all')
        a('s_barrier')
        if c == 7: stamp('w7')
        fill.extend(trread(2*c)); fill.extend(trread(2*c + 1))
        if c + 2 <= 7: fill.extend(w_issue(c + 2))
        if c == 5:
            for i in range(6): fill.extend(wo_issue(i))
        if c >= 6: fill.extend(wo_issue(c))
        if c == 0:
            a(f'v_lshlrev_b32 {v(vT+3)}, 3, {v(vQ)}\nv_add_u32 {v(vT+3)}, {T0P}, {v(vT+3)}')
            for i in range(4): a(f'ds_read_b64 {v(vQf+2*i,2)}, {v(vT+3)} offset:{128*i}', 'z')
    return f
drain([xread(0, tt) for tt in range(5)])
stage_w(0)()
drain(fill)
stamp('w0')
a.wait(lg='z')
a(f'''v_pk_add_f32 {v(vQf,2)}, {v(vQf,2)}, {v(vQf+2,2)}
v_pk_add_f32 {v(vQf+4,2)}, {v(vQf+4,2)}, {v(vQf+6,2)}
v_pk_add_f32 {v(vQf,2)}, {v(vQf,2)}, {v(vQf+4,2)}''')
ln_basic(vQf, vQf + 1, vT, vT + 2, vT + 1)
a(f'v_lshlrev_b32 {v(vT+5)}, 2, {v(vQ)}\nv_add_u32 {v(vT+5)}, {VM}, {v(vT+5)}')
a(f'ds_write_b64 {v(vSQ)}, {v(vT,2)}', 'sw')
a(f'ds_write2_b32 {v(vT+5)}, {v(vT)}, {v(vT+1)} offset0:0 offset1:80', 'sw')
mf = []
for n in range(16):
    for tt in range(5):
        for part in range(3):
            pos = n * 15 + tt * 3 + part
            pres = []
            if tt == 0 and part == 0:
                def blk(n=n):
                    while any(tag in (f'x{n}', f'w{n}') for _, tag in fill):
                        t, tag = fill.pop(0); a(t, tag)
                    a.wait(lg=[f'x{n}', f'w{n}'])
                    if n + 1 < 16:
                        xs = [xread(n + 1, t2_) for t2_ in range(5)]
                        fill[0:0] = xs
                pres.append(blk)
            if (pos + DEFER) % 30 == 0 and (pos + DEFER) // 30 <= 7: pres.append(stage_w((pos + DEFER) // 30))
            pre = (lambda ps=pres: [p() for p in ps]) if pres else None
            mf.append((pre, qkv_mfma(tt, part, n, v(vFr + (n & 1)*20 + 4*tt, 4), n == 0)))
interleave(mf, fill)
drain(fill)
for r in range(4):
    a(f'v_mov_b32_dpp {v(vCsQ+r)}, {v(acc(0,0)+r)} row_newbcast:0 row_mask:0xf bank_mask:0xf')
    a(f'v_mov_b32_dpp {v(vCsK+r)}, {v(acc(0,1)+r)} row_newbcast:0 row_mask:0xf bank_mask:0xf')
a(f'''v_mov_b32 {v(vCsV)}, {v(acc(0,2))}
v_mov_b32 {v(vCsV+1)}, {v(acc(0,2))}
v_permlane16_swap_b32 {v(vCsV)}, {v(vCsV+1)}
v_mov_b32 {v(vCsV+1)}, {v(vCsV)}
v_permlane32_swap_b32 {v(vCsV)}, {v(vCsV+1)}''')
stamp('gemm1')
def ffn_w_addr():
    a(f'''v_lshrrev_b32 {v(vT)}, 2, {v(vLane)}
s_lshl_b32 s0, {sW}, 7
v_add_u32 {v(vT)}, s0, {v(vT)}
v_mul_u32_u24 {v(vT)}, 2752, {v(vT)}
v_and_b32 {v(vT+1)}, 3, {v(vLane)}
v_and_b32 {v(vT+2)}, 2, {v(vG)}
v_xor_b32 {v(vT+1)}, {v(vT+1)}, {v(vT+2)}
v_lshl_add_u32 {v(vT)}, {v(vT+1)}, 4, {v(vT)}
s_lshl_b32 s0, {sJ}, 6
s_lshl_b32 s1, {sW}, 13''')
def ffn_gu_issue(rsrc, ldsbase):
    ffn_w_addr()
    for i in range(8):
        a(f's_add_u32 m0, s1, {ldsbase + i*1024}')
        a(f'buffer_load_dwordx4 {v(vT)}, {rsrc}, s0 offen lds')
        if i < 7: a(f's_add_u32 s0, s0, {16*2752}')

a.wait(vm=None, lg='all')
a.label('L_epi')
vSm = vFr
vVm = vFr + 10
vVc = vFr + 30
def cqr(tt): return vSm + 2*tt + 1
for tt in range(5):
    a(f'ds_read_b64 {v(vSm+2*tt,2)}, {v(vSQ)} offset:{tt*256}', f'e{tt}')
    a(f'ds_read_b128 {v(vVm+4*tt,4)}, {v(vVS)} offset:{tt*64}', f'e{tt}')
    a(f'ds_read_b128 {v(vVc+4*tt,4)}, {v(vVS)} offset:{320 + tt*64}', f'e{tt}')
def ln_tile(aq, ak, av, sm, vm_, vc_, qf, kf, vf, cq, bc):
    for h in range(2):
        a(f'v_pk_fma_f32 {v(aq+2*h,2)}, {v(vCsQ+2*h,2)}, {v(sm,2)}, {v(aq+2*h,2)} op_sel_hi:[1,0,1]')
        a(f'v_pk_fma_f32 {v(ak+2*h,2)}, {v(vCsK+2*h,2)}, {v(sm,2)}, {v(ak+2*h,2)} op_sel_hi:[1,0,1]')
        if bc: a(f'v_pk_fma_f32 {v(av+2*h,2)}, {v(vCsV,2)}, {v(sm,2)}, {v(av+2*h,2)} op_sel_hi:[0,0,1]')
        else: a(f'v_pk_fma_f32 {v(av+2*h,2)}, {v(vCsV,2)}, {v(vm_+2*h,2)}, {v(av+2*h,2)} op_sel_hi:[0,1,1]')
    for h in range(2):
        a(f'v_pk_mul_f32 {v(ak+2*h,2)}, {v(ak+2*h,2)}, {v(sm,2)} op_sel:[0,1] op_sel_hi:[1,1]')
        if bc: a(f'v_pk_mul_f32 {v(av+2*h,2)}, {v(av+2*h,2)}, {v(sm,2)} op_sel:[0,1] op_sel_hi:[1,1]')
        else: a(f'v_pk_mul_f32 {v(av+2*h,2)}, {v(av+2*h,2)}, {v(vc_+2*h,2)}')
        a(f'v_cvt_pk_bf16_f32 {v(qf+h)}, {v(aq+2*h)}, {v(aq+2*h+1)}')
    a(f'v_mul_f32 {v(cq)}, 0x3eb8aa3b, {v(sm+1)}')
    for h in range(2):
        a(f'v_cvt_pk_bf16_f32 {v(kf+h)}, {v(ak+2*h)}, {v(ak+2*h+1)}')
        a(f'v_cvt_pk_bf16_f32 {v(vf+h)}, {v(av+2*h)}, {v(av+2*h+1)}')
for tt in range(5):
    a.wait(lg=f'e{tt}')
    ln_tile(acc(tt,0), acc(tt,1), acc(tt,2), vSm+2*tt, vVm+4*tt, vVc+4*tt, vQf+2*tt, vKf+2*tt, vVf+2+2*tt, cqr(tt), False)
a(f's_cmp_eq_u32 {sP}, 0\ns_cbranch_scc0 L_fix')
a.label('L_attn')
vS = vAcc; vSp = vAcc + 20; vO = vAcc; vD = vAcc + 20; vMx = vAcc + 40; vMy = vAcc + 46
vPb = vFr + 10
vPk = vFr + 30
vPK = vFr + 40
for tt in range(5):
    a(f'v_mfma_f32_16x16x16_bf16 {v(vS+4*tt,4)}, {v(vKf+2*tt,2)}, {v(vQf+2*tt,2)}, {v(vBc,4)}')
    if tt > 0:
        a(f'v_mfma_f32_16x16x16_bf16 {v(vSp+4*tt,4)}, {v(vKf+2*tt-2,2)}, {v(vQf+2*tt,2)}, {v(vBp1 if tt == 1 else vBp,4)}')
for tt in range(5):
    s = vS + 4*tt
    if tt > 0:
        for r in range(4): a(f'v_max_f32 {v(s+r)}, {v(s+r)}, {v(vSp+4*tt+r)}')
    a(f'v_max3_f32 {v(vMx+tt)}, {v(s)}, {v(s+1)}, {v(s+2)}\nv_max_f32 {v(vMx+tt)}, {v(vMx+tt)}, {v(s+3)}')
    a(f'v_mov_b32 {v(vMy+tt)}, {v(vMx+tt)}')
for tt in range(5): a(f'v_permlane32_swap_b32 {v(vMx+tt)}, {v(vMy+tt)}')
for tt in range(5): a(f'v_max_f32 {v(vMx+tt)}, {v(vMx+tt)}, {v(vMy+tt)}\nv_mov_b32 {v(vMy+tt)}, {v(vMx+tt)}')
for tt in range(5): a(f'v_permlane16_swap_b32 {v(vMx+tt)}, {v(vMy+tt)}')
for tt in range(5):
    s = vS + 4*tt
    a(f'v_max_f32 {v(vMx+tt)}, {v(vMx+tt)}, {v(vMy+tt)}\nv_mul_f32 {v(vMx+tt)}, {v(vMx+tt)}, {v(cqr(tt))}')
    for r in range(4): a(f'v_fma_f32 {v(s+r)}, {v(s+r)}, {v(cqr(tt))}, -{v(vMx+tt)}')
    for r in range(4): a(f'v_exp_f32 {v(s+r)}, {v(s+r)}')
for tt in range(5):
    s = vS + 4*tt
    for h in range(2): a(f'v_cvt_pk_bf16_f32 {v(vPk+2*tt+h)}, {v(s+2*h)}, {v(s+2*h+1)}')
    for h in range(2):
        a(f'v_bfi_b32 {v(vPb+4*tt+h)}, {v(vMc+h)}, 0, {v(vPk+2*tt+h)}')
        a(f'v_and_b32 {v(vPb+4*tt+2+h)}, {v(vMc+h)}, {v(vPk+2*tt+h)}')
for tt in range(5):
    a(f'v_mfma_f32_16x16x16_bf16 {v(vD+4*tt,4)}, {v(vOnes,2)}, {v(vPk+2*tt,2)}, 0')
    a(f'v_mfma_f32_16x16x32_bf16 {v(vO+4*tt,4)}, {v(vVf+2*tt,4)}, {v(vPb+4*tt,4)}, 0')
for tt in range(5): a(f'v_rcp_f32 {v(vD+4*tt)}, {v(vD+4*tt)}')
for tt in range(5):
    o = vO + 4*tt; pk = vPK + 2*TILE_ORD.index(tt)
    for h in range(2): a(f'v_pk_mul_f32 {v(o+2*h,2)}, {v(o+2*h,2)}, {v(vD+4*tt,2)} op_sel_hi:[1,0]')
    for h in range(2): a(f'v_cvt_pk_bf16_f32 {v(pk+h)}, {v(o+2*h)}, {v(o+2*h+1)}')

def publish(pk, gbase, lds):
    for pr in range(3):
        a(f'v_permlane16_swap_b32 {v(pk+4*pr)}, {v(pk+4*pr+2)}\nv_permlane16_swap_b32 {v(pk+4*pr+1)}, {v(pk+4*pr+3)}')
    for pr, tile in enumerate((1, 3, 0)):
        if pr == 2: a('s_mov_b32 exec_lo, 0xffff\ns_mov_b32 exec_hi, 0xffff')
        if lds: a(f'ds_write_b128 {v(vPubL)}, {v(pk+4*pr,4)} offset:{tile*2048}', 'own')
        if gbase is not None:
            a(f's_mov_b32 s0, {gbase + tile*16384}')
            a(f'buffer_store_dwordx4 {v(pk+4*pr,4)}, {v(vPubG)}, {rWS}, s0 offen sc1', 'pub')
    a('s_mov_b64 exec, -1')
def flag_set(slot_s):
    a(f'''s_lshl_b32 s0, {sM}, 2
s_add_u32 s0, s0, {sW}
s_lshl_b64 exec, 1, s0
v_mov_b32 {v(vT)}, 1''')
    a(f'buffer_store_dword {v(vT)}, {v(vFlag)}, {rWS}, {slot_s} offen sc1', 'flag')
    a('s_mov_b64 exec, -1')
def flag_wait(slot_s):
    l = poll_begin()
    a(f'buffer_load_dword {v(vT)}, {v(vFlag)}, {rWS}, {slot_s} offen sc1', 'poll')
    a.wait(vm='all')
    a(f'v_cmp_eq_u32 vcc, -1, {v(vT)}')
    poll_end(l)
def tile_dma(gbase):
    a(f's_lshl_b32 s1, {sW}, 12')
    for tt in range(5):
        a(f's_add_u32 m0, s1, {tt*16384}\ns_mov_b32 s0, {gbase - 4096 + tt*16384}')
        for j in range(4):
            a(f'buffer_load_dwordx4 {v(vDmaA if j < 2 else vDmaB)}, {rWS}, s0 offen offset:{j*1024} sc1 lds', f'T{tt}')
def tread(tt, ks, dst):
    return f'ds_read_b128 {v(dst,4)}, {v(vL16b if tt == 4 else vL16)} offset:{(tt & 3)*16384 + ks*1024}'

stamp2 = lambda n: None
publish(vPK, TA, False)
lp1 = a.newl('p1')
a(f's_cmp_eq_u32 {sP}, 0\ns_cbranch_scc0 {lp1}')
a.track = False
a('s_waitcnt vmcnt(0)\ns_barrier')
for ks in range(16):
    for hh in range(2):
        a(f'ds_read_b64_tr_b16 {ag(wofrag(ks)+2*hh,2)}, {v(vTrO)} offset:{ks*4096 + hh*512}')
l = poll_begin()
a(f'''v_lshlrev_b32 {v(vT+1)}, 2, {v(vLane)}
global_load_dword {v(vT)}, {v(vT+1)}, {pDBG} sc1
s_waitcnt vmcnt(0)
v_cmp_eq_u32 vcc, 0, {v(vT)}
s_and_b32 vcc_lo, vcc_lo, 0x55555555
s_and_b32 vcc_hi, vcc_hi, 0x55555555
s_cmp_lg_u64 vcc, 0
s_cselect_b64 vcc, -1, 0''')
poll_end(l)
lw = a.newl('nw')
a(f's_cmp_lt_i32 {sJ}, 0\ns_cbranch_scc1 {lw}')
a(f'''v_lshlrev_b32 {v(vT+1)}, 1, {v(vG)}
v_xor_b32 {v(vT+1)}, {v(vQ)}, {v(vT+1)}
v_lshlrev_b32 {v(vT+1)}, 4, {v(vT+1)}
v_lshl_add_u32 {v(vT+1)}, {v(vG)}, 10, {v(vT+1)}
v_xor_b32 {v(vT+2)}, 128, {v(vT+1)}
s_lshl_b32 s0, {sJ}, 15
s_lshl_b32 s1, {sW}, 8
s_add_u32 s0, s0, s1
s_lshl_b32 s1, {sW}, 13''')
for i in range(8):
    a(f's_add_u32 m0, s1, {WDL + i*1024}')
    a(f'buffer_load_dwordx4 {v(vT+2 if (i >> 1) & 1 else vT+1)}, {rWD}, s0 offen lds')
    if i < 7: a('s_add_u32 s0, s0, 4096')
ffn_gu_issue(rWG, WGL)
a(f'''v_lshrrev_b32 {v(vT+1)}, 2, {v(vQ)}
v_and_b32 {v(vT+2)}, 1, {v(vG)}
v_lshl_or_b32 {v(vT+2)}, {v(vT+2)}, 2, {v(vT+1)}
v_lshlrev_b32 {v(vT+2)}, 5, {v(vT+2)}
v_and_b32 {v(vT+3)}, 3, {v(vLane)}
v_lshlrev_b32 {v(vT+3)}, 4, {v(vT+3)}
v_xor_b32 {v(vT+2)}, {v(vT+2)}, {v(vT+3)}
v_lshl_add_u32 {v(vT+1)}, {v(vG)}, 3, {v(vT+1)}
v_lshlrev_b32 {v(vT+1)}, 8, {v(vT+1)}
s_add_u32 s1, s1, {WDL}
v_add_u32 {v(vT+1)}, s1, {v(vT+1)}
s_waitcnt vmcnt(8) lgkmcnt(0)''')
for i in range(4):
    a(f'v_xor_b32 {v(vT+3)}, {64*i}, {v(vT+2)}\nv_add_u32 {v(vT+3)}, {v(vT+1)}, {v(vT+3)}')
    for tb in range(2):
        for hh in range(2):
            a(f'ds_read_b64_tr_b16 {v(vWd + (2*i+tb)*4 + 2*hh, 2)}, {v(vT+3)} offset:{hh*1024 + tb*8}')
a('s_waitcnt lgkmcnt(0)')
ffn_gu_issue(rWU, WUL)
a.label(lw)
a('s_waitcnt lgkmcnt(0)')
a.track = True
a.label(lp1)
a.wait(vm='all')
a(f's_lshl_b32 {sT[0]}, {sP}, 9')
flag_set(sT[0])
a('s_barrier')
flag_wait(sT[0])
tile_dma(TA)
for tt in range(6):
    fill = []
    if tt < 5:
        a.wait(vm=f'T{tt}')
        a('s_barrier')
    for ks in range(16):
        if tt > 0:
            a.wait(lg=f'o{tt-1}_{ks}')
            d = v(vRes + 4*(tt-1), 4)
            a(f'v_mfma_f32_16x16x32_bf16 {d}, {ag(wofrag(ks),4)}, {v(vFr+4*ks,4)}, {d}')
        if tt < 5: a(tread(tt, ks, vFr + 4*ks), f'o{tt}_{ks}')
for tt in range(5):
    pk = vPK + 2*TILE_ORD.index(tt)
    for h in range(2): a(f'v_cvt_pk_bf16_f32 {v(pk+h)}, {v(vRes+4*tt+2*h)}, {v(vRes+4*tt+2*h+1)}')
publish(vPK, TB, True)
a.wait(lg='all')
a('s_barrier')
fa, fz, dl, dg, zl, zg = vFr, vFr + 8, vFr + 16, vFr + 20, vFr + 24, vFr + 28
a(f'v_add_u32 {v(vT)}, {OWN}, {v(vL16)}')
for s in range(2): a(f'ds_read_b128 {v(fa+4*s,4)}, {v(vOwnR)} offset:{s*1024}', 'fa')
for s in range(2): a(f'ds_read_b128 {v(fz+4*s,4)}, {v(vT)} offset:{s*1024}', 'fz')
for (f_, l_, g_, tag) in ((fa, dl, dg, 'fa'), (fz, zl, zg, 'fz')):
    a.wait(lg=tag)
    for s in range(2):
        a(f'v_mfma_f32_16x16x32_bf16 {v(g_,4)}, {v(f_+4*s,4)}, {v(f_+4*s,4)}, {0 if s == 0 else v(g_,4)}')
    for s in range(2):
        a(f'v_mfma_f32_16x16x32_bf16 {v(l_,4)}, {v(vLf+4*s,4)}, {v(f_+4*s,4)}, {0 if s == 0 else v(l_,4)}')
diag_select(dl + 2, dg)
a(f'v_mov_b32 {v(dl+3)}, 0\ns_mul_i32 {sT[1]}, {sP}, {ST_L}\ns_mov_b64 exec, {mDIAG}')
a(f'buffer_store_dwordx4 {v(dl,4)}, {v(vStP)}, {rWS}, {sT[1]} offen sc1', 'stp')
a('s_mov_b64 exec, -1')
lz = a.newl('nz')
a(f's_or_b32 s0, {sP}, {sW}\ns_cbranch_scc1 {lz}')
a.track = False
diag_select(zl + 2, zg)
a(f'v_mov_b32 {v(zl+3)}, 0\nv_subrev_u32 {v(vT)}, 256, {v(vStP)}\ns_mov_b64 exec, {mDIAG}')
a(f'buffer_store_dwordx4 {v(zl,4)}, {v(vT)}, {rWS}, 0 offen sc1')
a('s_mov_b64 exec, -1')
a.track = True
a.label(lz)
gg = vFr + 32
l = poll_begin()
for i in range(4): a(f'buffer_load_dwordx4 {v(gg+4*i,4)}, {v(vStG)}, {rWS}, {sT[1]} offen offset:{i*1280} sc1', 'poll')
a.wait(vm='all')
a(f'''v_or3_b32 {v(vT)}, {v(gg+3)}, {v(gg+7)}, {v(gg+11)}
v_or_b32 {v(vT)}, {v(vT)}, {v(gg+15)}
v_cmp_ne_u32 vcc, 0, {v(vT)}''')
poll_end(l)
lb = a.newl('nb')
a(f's_cmp_eq_u32 {sP}, 0\ns_cbranch_scc0 {lb}')
a.track = False
a(f's_mov_b32 {sT[0]}, 256')
flag_set(sT[0])
a.track = True
a.label(lb)
a(f'''v_pk_add_f32 {v(gg,2)}, {v(gg,2)}, {v(gg+4,2)}
v_pk_add_f32 {v(gg+8,2)}, {v(gg+8,2)}, {v(gg+12,2)}
v_add_f32 {v(gg+2)}, {v(gg+2)}, {v(gg+6)}
v_add_f32 {v(gg+10)}, {v(gg+10)}, {v(gg+14)}
v_pk_add_f32 {v(gg,2)}, {v(gg,2)}, {v(gg+8,2)}
v_add_f32 {v(gg+2)}, {v(gg+2)}, {v(gg+10)}''')
for i in range(3): a(f'v_mov_b32 {v(gg+4+i)}, {v(gg+i)}')
for i in range(3): a(f'v_permlane16_swap_b32 {v(gg+i)}, {v(gg+4+i)}')
for i in range(3): a(f'v_add_f32 {v(gg+i)}, {v(gg+i)}, {v(gg+4+i)}')
q4, x4, var = vFr, vFr + 4, vFr + 8
ln_basic(gg, gg + 2, q4, var, x4 + 2)
a(f'''v_fma_f32 {v(x4)}, {v(q4)}, {sSW}, {v(gg+1)}
v_add_f32 {v(q4+2)}, 1.0, {v(x4+2)}
v_mul_f32 {v(x4)}, {v(x4)}, {v(x4+2)}
v_mul_f32 {v(q4+3)}, {v(q4)}, {v(x4+2)}
v_mul_f32 {v(vT)}, {v(q4+2)}, {v(q4+2)}
v_max_f32_dpp {v(vT+1)}, {v(x4)}, {v(x4)} row_ror:8 row_mask:0xf bank_mask:0xf
v_fmaak_f32 {v(vT)}, {v(vT)}, {v(var)}, 0x3727c5ac
v_rsq_f32 {v(vT)}, {v(vT)}
v_max_f32_dpp {v(vT+1)}, {v(vT+1)}, {v(vT+1)} row_ror:4 row_mask:0xf bank_mask:0xf
v_mov_b32 {v(x4+3)}, {v(q4+3)}
v_mul_f32 {v(q4+1)}, {v(q4+2)}, {v(vT)}
v_max_f32_dpp {v(vT+1)}, {v(vT+1)}, {v(vT+1)} row_ror:2 row_mask:0xf bank_mask:0xf
s_lshl_b32 s0, {sW}, 4
v_add_u32 {v(x4+1)}, s0, {v(vQ)}
v_max_f32_dpp {v(vT+1)}, {v(vT+1)}, {v(vT+1)} row_ror:1 row_mask:0xf bank_mask:0xf''')
a(f'ds_write_b128 {v(vStW)}, {v(q4,4)}', 'sw')
a(f'ds_write2_b32 {v(vStV)}, {v(q4)}, {v(q4+1)} offset0:0 offset1:80', 'sw')
a(f'''v_cmp_eq_f32 vcc, {v(x4)}, {v(vT+1)}
s_add_u32 s0, s0, {AMX}
v_mov_b32 {v(vT)}, s0
s_ff1_i32_b32 s1, vcc_lo
s_and_b32 s1, s1, 15
s_lshl_b64 exec, 1, s1''')
a(f'ds_write_b128 {v(vT)}, {v(x4,4)}', 'sw')
a(f'''s_mov_b64 exec, -1
v_and_b32 {v(vT)}, 3, {v(vLane)}
v_lshlrev_b32 {v(vT)}, 4, {v(vT)}
v_add_u32 {v(vT)}, {AMX}, {v(vT)}''')
a.wait(lg='all')
a('s_barrier')
a(f'ds_read_b128 {v(x4,4)}, {v(vT)}', 'am')
vAb = vFr + 12
for tt in range(1, 5): a(f'ds_read_b64 {v(vAb+2*tt,2)}, {v(vSQ)} offset:{tt*256 + 8}', 'ab')
a.wait(lg='am')
a(f'''v_max_f32_dpp {v(vT+1)}, {v(x4)}, {v(x4)} quad_perm:[1,0,3,2] row_mask:0xf bank_mask:0xf
v_max_f32_dpp {v(vT+1)}, {v(vT+1)}, {v(vT+1)} quad_perm:[2,3,0,1] row_mask:0xf bank_mask:0xf
v_cmp_eq_f32 vcc, {v(x4)}, {v(vT+1)}
s_ff1_i32_b32 s1, vcc_lo
s_and_b32 s1, s1, 3
v_readlane_b32 {sBL}, {v(x4+1)}, s1
v_readlane_b32 {sBR}, {v(x4)}, s1
v_readlane_b32 {sBS}, {v(x4+2)}, s1
v_readlane_b32 {sBN}, {v(x4+3)}, s1''')
lcn, lcr = a.newl('cn'), a.newl('cr')
a.track = False
a(f'''s_cmp_eq_u32 {sW}, 0
s_cbranch_scc0 {lcr}
s_lshr_b32 s0, {sBL}, 4
s_lshl_b32 s0, s0, 11
s_and_b32 s1, {sBL}, 15
s_lshl_b32 s1, s1, 4
s_add_u32 s0, s0, s1
s_add_u32 s0, s0, {OWN + 2048}
v_lshrrev_b32 {v(vT)}, 2, {v(vLane)}
v_and_b32 {v(vT)}, 7, {v(vT)}
v_lshlrev_b32 {v(vT)}, 8, {v(vT)}
v_and_b32 {v(vT+1)}, 3, {v(vLane)}
v_lshl_add_u32 {v(vT)}, {v(vT+1)}, 2, {v(vT)}
v_add_u32 {v(vT)}, s0, {v(vT)}
ds_read_b32 {v(vT+1)}, {v(vT)}
s_mul_i32 s0, {sP}, {CA_L}
s_lshl_b32 s1, {sG}, 10
s_add_u32 s0, s0, s1
s_lshl_b32 s1, {sM}, 7
s_add_u32 s0, s0, s1
s_add_u32 s0, s0, {CA}
v_lshlrev_b32 {v(vT)}, 2, {v(vLane)}
v_mov_b32 {v(vT+3)}, {sBN}
s_waitcnt lgkmcnt(0)
v_lshlrev_b32 {v(vT+2)}, 16, {v(vT+1)}
v_and_b32 {v(vT+1)}, 0xffff0000, {v(vT+1)}
v_fma_f32 {v(vT+2)}, {v(vT+2)}, {sBS}, {v(vT+3)}
v_fma_f32 {v(vT+1)}, {v(vT+1)}, {sBS}, {v(vT+3)}
v_cvt_pk_bf16_f32 {v(vT+1)}, {v(vT+2)}, {v(vT+1)}
s_mov_b32 exec_hi, 0
buffer_store_dword {v(vT+1)}, {v(vT)}, {rWS}, s0 offen sc1
s_mov_b64 exec, -1
s_branch {lcn}''')
a.label(lcr)
a(f'''s_lshl_b32 s0, {sM}, 2
s_add_u32 s0, s0, {sW}
s_cmp_eq_u32 s0, 1
s_cbranch_scc0 {lcn}
s_lshl_b32 s0, {sG}, 6
s_add_u32 s0, s0, {sBL}
v_mov_b32 {v(vT+2)}, {sBR}
v_mov_b32 {v(vT+3)}, s0
v_mov_b32 {v(vT)}, 0
s_mul_i32 s0, {sP}, {RG_L}
s_lshl_b32 s1, {sG}, 8
s_add_u32 s0, s0, s1
s_add_u32 s0, s0, {RG}
s_mov_b64 exec, 1
buffer_store_dwordx2 {v(vT+2,2)}, {v(vT)}, {rWS}, s0 offen sc1
s_mov_b64 exec, -1''')
a.label(lcn)
a.track = True
a.wait(lg='all')
for tt in range(1, 5):
    for h in range(2):
        b = vRes + 4*tt + 2*h
        a(f'v_pk_fma_f32 {v(b,2)}, {v(b,2)}, {v(vAb+2*tt,2)}, {v(vAb+2*tt,2)} op_sel:[0,0,1] op_sel_hi:[1,0,1]')
def out_store():
    for tt in range(1, 5):
        for h in range(2): a(f'v_cvt_pk_bf16_f32 {v(vPK+2*(tt-1)+h)}, {v(vRes+4*tt+2*h)}, {v(vRes+4*tt+2*h+1)}')
    a(f'''v_and_b32 {v(vT)}, 31, {v(vLane)}
v_lshlrev_b32 {v(vT)}, 11, {v(vT)}
v_lshrrev_b32 {v(vT+1)}, 5, {v(vLane)}
v_lshl_add_u32 {v(vT)}, {v(vT+1)}, 4, {v(vT)}
s_and_b32 s0, {sG}, 15
s_lshl_b32 s0, s0, 17
s_lshr_b32 s1, {sG}, 4
s_lshl_b32 s1, s1, 10
s_add_u32 s0, s0, s1
s_lshl_b32 s1, {sM}, 7
s_add_u32 s0, s0, s1
s_lshl_b32 s1, {sW}, 5
s_add_u32 s0, s0, s1
s_add_u32 s1, s0, 65536''')
    for pr in range(2):
        a(f'v_permlane16_swap_b32 {v(vPK+4*pr)}, {v(vPK+4*pr+2)}\nv_permlane16_swap_b32 {v(vPK+4*pr+1)}, {v(vPK+4*pr+3)}')
    a(f'buffer_store_dwordx4 {v(vPK,4)}, {v(vT)}, {rOUT}, s0 offen')
    a(f'buffer_store_dwordx4 {v(vPK+4,4)}, {v(vT)}, {rOUT}, s1 offen')
lo = a.newl('no')
a(f's_cmp_eq_u32 {sP}, 0\ns_cbranch_scc1 {lo}')
a.track = False
out_store()
a.track = True
a.label(lo)

def rg_wait():
    a(f'''v_and_b32 {v(vT)}, 31, {v(vLane)}
v_lshlrev_b32 {v(vT)}, 8, {v(vT)}
s_mul_i32 s0, {sP}, {RG_L}
s_add_u32 s0, s0, {RG}''')
    l = poll_begin()
    a(f'buffer_load_dwordx2 {v(vT+2,2)}, {v(vT)}, {rWS}, s0 offen sc1')
    a(f's_waitcnt vmcnt(0)\nv_cmp_eq_u32 vcc, -1, {v(vT+3)}')
    poll_end(l)
    a(f'v_max_f32_dpp {v(vT+1)}, {v(vT+2)}, {v(vT+2)} row_ror:8 row_mask:0xf bank_mask:0xf')
    for sh in (4, 2, 1): a(f'v_max_f32_dpp {v(vT+1)}, {v(vT+1)}, {v(vT+1)} row_ror:{sh} row_mask:0xf bank_mask:0xf')
    a(f'''v_mov_b32 {v(vT)}, {v(vT+1)}
v_permlane16_swap_b32 {v(vT)}, {v(vT+1)}
v_max_f32 {v(vT+1)}, {v(vT)}, {v(vT+1)}
v_cmp_eq_f32 vcc, {v(vT+2)}, {v(vT+1)}
s_ff1_i32_b32 s1, vcc_lo
s_and_b32 s1, s1, 31
v_readlane_b32 {sWI}, {v(vT+3)}, s1
v_readlane_b32 {sWR}, {v(vT+2)}, s1''')
a.track = False
rg_wait()
lnf = a.newl('nf')
a(f's_cmp_lt_i32 {sJ}, 0\ns_cbranch_scc1 {lnf}')
xf = vAcc + 12
fg = vAcc + 28
a(f'''s_lshr_b32 s0, {sWI}, 6
s_lshl_b32 s0, s0, 10
s_mul_i32 s1, {sP}, {CA_L}
s_add_u32 s0, s0, s1
s_lshl_b32 s1, {sW}, 8
s_add_u32 s0, s0, s1
s_add_u32 s0, s0, {CA}
v_lshlrev_b32 {v(vT)}, 4, {v(vG)}''')
a(f'''v_lshrrev_b32 {v(vT+1)}, 2, {v(vQ)}
v_lshl_add_u32 {v(vT+1)}, {v(vG)}, 3, {v(vT+1)}
v_lshlrev_b32 {v(vT+1)}, 6, {v(vT+1)}
v_and_b32 {v(vT+2)}, 3, {v(vLane)}
v_lshl_add_u32 {v(vT+1)}, {v(vT+2)}, 3, {v(vT+1)}
v_and_b32 {v(vT+2)}, 1, {v(vG)}
v_lshl_add_u32 {v(vT+1)}, {v(vT+2)}, 5, {v(vT+1)}
s_lshl_b32 s1, {sW}, 13
s_add_u32 s1, s1, {RING}
v_add_u32 {v(vT+1)}, s1, {v(vT+1)}
v_xor_b32 {v(vT+2)}, 32, {v(vT+1)}''')
l = poll_begin()
for s in range(4): a(f'buffer_load_dwordx4 {v(xf+4*s,4)}, {v(vT)}, {rWS}, s0 offen offset:{64*s} sc1')
a('s_waitcnt vmcnt(0)')
a(f'v_max3_u32 {v(vT+3)}, {v(xf)}, {v(xf+1)}, {v(xf+2)}')
for i in range(3, 15, 2): a(f'v_max3_u32 {v(vT+3)}, {v(vT+3)}, {v(xf+i)}, {v(xf+i+1)}')
a(f'v_max_u32 {v(vT+3)}, {v(vT+3)}, {v(xf+15)}\nv_cmp_eq_u32 vcc, -1, {v(vT+3)}')
poll_end(l)
for s in range(4):
    for u in range(2):
        for ft in range(2):
            for hh in range(2):
                a(f'ds_read_b64_tr_b16 {v(vFr + (s*4+u*2+ft)*4 + 2*hh, 2)}, {v(vT+2 if ft else vT+1)} offset:{(WUL if u else WGL) - RING + s*2048 + hh*256}')
    if s & 1: a('s_waitcnt lgkmcnt(0)')
for s in range(4):
    for k in range(4):
        d = v(fg + 4*k, 4)
        a(f'v_mfma_f32_16x16x32_bf16 {d}, {v(vFr+(s*4+k)*4,4)}, {v(xf+4*s,4)}, {0 if s == 0 else d}')
a(f'''s_lshl_b32 s1, {sW}, 8
s_add_u32 s1, s1, {RED}
v_add_u32 {v(vT+1)}, s1, {v(vT)}
s_mov_b32 exec_lo, 0x10001
s_mov_b32 exec_hi, 0x10001''')
for k in range(4): a(f'ds_write_b128 {v(vT+1)}, {v(fg+4*k,4)} offset:{64*k}')
a(f'''s_mov_b64 exec, -1
v_lshlrev_b32 {v(vT+1)}, 2, {v(vLane)}
v_add_u32 {v(vT+1)}, {RED}, {v(vT+1)}
s_waitcnt lgkmcnt(0)
s_barrier
ds_read2st64_b32 {v(xf,2)}, {v(vT+1)} offset0:0 offset1:1
ds_read2st64_b32 {v(xf+2,2)}, {v(vT+1)} offset0:2 offset1:3
s_lshl_b32 s1, {sW}, 6
s_add_u32 s1, s1, {HB}
v_lshl_add_u32 {v(vT+2)}, {v(vLane)}, 1, s1
v_add_u32 {v(vT+3)}, s1, {v(vT)}
s_waitcnt lgkmcnt(0)
v_add_f32 {v(xf)}, {v(xf)}, {v(xf+1)}
v_add_f32 {v(xf+2)}, {v(xf+2)}, {v(xf+3)}
v_add_f32 {v(xf)}, {v(xf)}, {v(xf+2)}
v_mov_b32 {v(xf+1)}, {v(xf)}
v_permlane32_swap_b32 {v(xf)}, {v(xf+1)}
v_mul_f32 {v(xf+2)}, 0xbfb8aa3b, {v(xf)}
v_exp_f32 {v(xf+2)}, {v(xf+2)}
v_mul_f32 {v(xf)}, {v(xf)}, {v(xf+1)}
v_add_f32 {v(xf+2)}, 1.0, {v(xf+2)}
v_rcp_f32 {v(xf+2)}, {v(xf+2)}
v_mul_f32 {v(xf)}, {v(xf)}, {v(xf+2)}
v_cvt_pk_bf16_f32 {v(xf)}, {v(xf)}, {v(xf)}
s_mov_b32 exec_hi, 0
ds_write_b16 {v(vT+2)}, {v(xf)}
s_mov_b64 exec, -1
s_waitcnt lgkmcnt(0)
ds_read_b128 {v(xf+4,4)}, {v(vT+3)}
s_waitcnt lgkmcnt(0)''')
yd = vFr
for ct in range(8): a(f'v_mfma_f32_16x16x32_bf16 {v(yd+4*ct,4)}, {v(vWd+4*ct,4)}, {v(xf+4,4)}, 0')
a(f'''v_lshlrev_b32 {v(vT+1)}, 6, {v(vQ)}
v_add_u32 {v(vT+1)}, {v(vT+1)}, {v(vT)}
s_lshl_b32 s0, {sJ}, 10
s_mul_i32 s1, {sP}, {YP_L}
s_add_u32 s0, s0, s1
s_lshl_b32 s1, {sW}, 8
s_add_u32 s0, s0, s1
s_add_u32 s0, s0, {YP}''')
for i in range(4):
    a(f's_mov_b32 exec_lo, {0x10001 << i:#x}\ns_mov_b32 exec_hi, {0x10001 << i:#x}')
    for h in range(4): a(f'v_cvt_pk_bf16_f32 {v(xf+8+h)}, {v(yd+8*i+2*h)}, {v(yd+8*i+2*h+1)}')
a(f'''s_mov_b32 exec_lo, 0xf000f
s_mov_b32 exec_hi, 0xf000f
buffer_store_dwordx4 {v(xf+8,4)}, {v(vT+1)}, {rWS}, s0 offen sc1
s_mov_b64 exec, -1''')
a.label(lnf)
a(f's_cmp_eq_u32 {sP}, 0\ns_cbranch_scc0 L_final')
a.track = True

a(f's_mov_b32 {sT[0]}, 256')
flag_wait(sT[0])
tile_dma(TB)
NR = 8
seq = [(tt, ks) for tt in range(5) for ks in range(16)]
def p3_read(i):
    tt, ks = seq[i]
    if ks == 0:
        a.wait(vm=f'T{tt}'); a('s_barrier')
    a(tread(tt, ks, vFr + 4*(i % NR)), f'p{i}')
for i in range(NR - 1): p3_read(i)
for i, (tt, ks) in enumerate(seq):
    a.wait(lg=f'p{i}')
    for part in range(3):
        a(qkv_mfma(tt, part, ks, v(vFr + 4*(i % NR), 4), ks == 0))
        if part == 0 and i + NR - 1 < len(seq): p3_read(i + NR - 1)
a(f'''v_mov_b32 {v(vT)}, {v(vStG)}
v_mov_b32 {v(vT+1)}, {v(vStW)}
v_mov_b32 {v(vT+2)}, {v(vStV)}
v_permlane32_swap_b32 {v(vStG)}, {v(vT)}
v_permlane32_swap_b32 {v(vStW)}, {v(vT+1)}
v_permlane32_swap_b32 {v(vStV)}, {v(vT+2)}
s_mov_b32 {sP}, 1
s_branch L_epi''')

a.track = False
def y_gather(layer):
    yl = vAcc
    ya = vAcc + 44
    a(f'''v_lshlrev_b32 {v(vT)}, 4, {v(vQ)}
v_lshl_add_u32 {v(vT)}, {v(vG)}, 10, {v(vT)}
v_mov_b32 {v(vT+1)}, 0x3f80
v_mov_b32 {v(vT+2)}, 0x3f800000
v_mov_b32 {v(yl+40)}, 0
v_mov_b32 {v(yl+41)}, 0
v_mov_b32 {v(yl+42)}, 0
v_mov_b32 {v(yl+43)}, 0''')
    l = poll_begin()
    a(f's_lshl_b32 s0, {sW}, 8\ns_add_u32 s0, s0, {YP + layer*YP_L}')
    for i in range(11):
        if i == 10: a('s_mov_b32 exec_hi, 0xffff')
        a(f'buffer_load_dwordx4 {v(yl+4*i,4)}, {v(vT)}, {rWS}, s0 offen sc1')
        if i < 10: a('s_add_u32 s0, s0, 4096')
    a(f's_mov_b64 exec, -1\nv_mov_b32 {v(vT+3)}, 0')
    for i in range(11):
        a(f's_waitcnt vmcnt({10-i})')
        a(f'v_max3_u32 {v(vT+3)}, {v(vT+3)}, {v(yl+4*i)}, {v(yl+4*i+1)}\nv_max3_u32 {v(vT+3)}, {v(vT+3)}, {v(yl+4*i+2)}, {v(yl+4*i+3)}')
        for e in range(8):
            a(f'v_dot2_f32_bf16 {v(ya+e)}, {v(yl+4*i+e//2)}, {v(vT+1+(e&1))}, {0 if i == 0 else v(ya+e)}')
    a(f'v_cmp_eq_u32 vcc, -1, {v(vT+3)}')
    poll_end(l)
    a('s_nop 2')
    for e in range(4): a(f'v_permlane32_swap_b32 {v(ya+e)}, {v(ya+4+e)}')
    for e in range(4): a(f'v_add_f32 {v(ya+e)}, {v(ya+e)}, {v(ya+4+e)}')
    for e in range(2): a(f'v_permlane16_swap_b32 {v(ya+e)}, {v(ya+2+e)}')
    a(f'''v_mov_b32 {v(vT+1)}, {sWR}
v_mul_f32 {v(vT+1)}, 0xbfb8aa3b, {v(vT+1)}
v_exp_f32 {v(vT+1)}, {v(vT+1)}
v_add_f32 {v(ya)}, {v(ya)}, {v(ya+2)}
v_add_f32 {v(vT+1)}, 1.0, {v(vT+1)}
v_rcp_f32 {v(vT+1)}, {v(vT+1)}
v_add_f32 {v(ya+1)}, {v(ya+1)}, {v(ya+3)}
v_mul_f32 {v(ya)}, {v(ya)}, {v(vT+1)}
v_mul_f32 {v(ya+1)}, {v(ya+1)}, {v(vT+1)}''')
    a(f'''s_lshl_b32 s0, {sW}, 7
v_lshl_add_u32 {v(vT)}, {v(vQ)}, 3, s0
v_lshl_add_u32 {v(vT)}, {v(vG)}, 1, {v(vT)}''')
    return ya
def res_patch_addr():
    a(f'''s_lshl_b32 s0, {sM}, 8
s_lshl_b32 s1, {sW}, 6
s_add_u32 s0, s0, s1
s_add_u32 s0, s0, {YF}
v_lshl_add_u32 {v(vT+1)}, {v(vG)}, 4, s0''')

a.label('L_fix')
sTT, sQQ = sT[2], sT[3]
lown = a.newl('own')
a(f'''s_lshr_b32 s0, {sWI}, 6
s_and_b32 s1, {sWI}, 63
s_lshr_b32 {sTT}, s1, 4
s_add_u32 {sTT}, {sTT}, 1
s_and_b32 {sQQ}, s1, 15
s_cmp_eq_u32 s0, {sG}
s_cbranch_scc1 {lown}
s_add_u32 s0, s0, 1
s_cmp_eq_u32 s0, {sG}
s_cbranch_scc0 L_attn
s_and_b32 s0, {sG}, 15
s_cbranch_scc0 L_attn
s_cmp_ge_u32 s1, 57
s_cbranch_scc0 L_attn
s_mov_b32 {sTT}, 0''')
a.label(lown)
ya = y_gather(0)
a(f'''s_lshl_b32 s0, {sM}, 6
v_subrev_u32 {v(vT+1)}, s0, {v(vT)}
v_and_b32 {v(vT+1)}, 511, {v(vT+1)}
v_lshrrev_b32 {v(vT+2)}, 3, {v(vT+1)}
v_lshlrev_b32 {v(vT+2)}, 8, {v(vT+2)}
v_lshl_add_u32 {v(vT+2)}, {v(vG)}, 2, {v(vT+2)}
s_lshl_b32 s0, {sTT}, 14
s_lshl_b32 s1, {sQQ}, 4
s_add_u32 s0, s0, s1
v_add_u32 {v(vT+2)}, s0, {v(vT+2)}
ds_read_b32 {v(ya+2)}, {v(vT+2)}
s_lshl_b32 s0, {sTT}, 8
s_add_u32 s0, s0, s1
s_add_u32 s0, s0, {SQ + 8}
v_mov_b32 {v(vT+2)}, s0
ds_read_b64 {v(ya+4,2)}, {v(vT+2)}
v_lshlrev_b32 {v(vT)}, 2, {v(vT)}
v_add_u32 {v(vT)}, {YF}, {v(vT)}
v_lshlrev_b32 {v(vT+1)}, 1, {v(vT+1)}
v_add_u32 {v(vT+1)}, {ROW}, {v(vT+1)}
ds_write_b64 {v(vT)}, {v(ya,2)}
s_waitcnt lgkmcnt(1)
v_and_b32 {v(ya+3)}, 0xffff0000, {v(ya+2)}
v_lshlrev_b32 {v(ya+2)}, 16, {v(ya+2)}
v_fma_f32 {v(ya+2)}, {v(ya+2)}, {v(ya+4)}, {v(ya+5)}
v_fma_f32 {v(ya+3)}, {v(ya+3)}, {v(ya+4)}, {v(ya+5)}
v_add_f32 {v(ya+2)}, {v(ya+2)}, {v(ya)}
v_add_f32 {v(ya+3)}, {v(ya+3)}, {v(ya+1)}
v_cvt_pk_bf16_f32 {v(ya+4)}, {v(ya+2)}, {v(ya+3)}
ds_write_b32 {v(vT+1)}, {v(ya+4)}
v_lshlrev_b32 {v(ya+2)}, 16, {v(ya+4)}
v_and_b32 {v(ya+3)}, 0xffff0000, {v(ya+4)}
v_add_f32 {v(ya+6)}, {v(ya+2)}, {v(ya+3)}
v_mul_f32 {v(ya+7)}, {v(ya+2)}, {v(ya+2)}
v_fmac_f32 {v(ya+7)}, {v(ya+3)}, {v(ya+3)}''')
for sh in (8, 4, 2, 1):
    for e in (6, 7): a(f'v_add_f32_dpp {v(ya+e)}, {v(ya+e)}, {v(ya+e)} row_ror:{sh} row_mask:0xf bank_mask:0xf')
a(f'''s_lshl_b32 s0, {sW}, 5
s_add_u32 s0, s0, {RED}
v_lshl_add_u32 {v(vT+2)}, {v(vG)}, 3, s0
ds_write_b64 {v(vT+2)}, {v(ya+6,2)}
v_lshlrev_b32 {v(vT+2)}, 3, {v(vQ)}
v_add_u32 {v(vT+2)}, {RED}, {v(vT+2)}
v_lshlrev_b32 {v(vT+3)}, 4, {v(vG)}
v_add_u32 {v(vT+3)}, {ROW}, {v(vT+3)}''')
res_patch_addr()
a('s_waitcnt lgkmcnt(0)\ns_barrier')
fq, fk, fv, fs, fy = vAcc, vAcc + 4, vAcc + 8, vAcc + 12, vAcc + 16
rf = vAcc + 20
a(f'ds_read_b64 {v(fs,2)}, {v(vT+2)}\nds_read_b128 {v(fy,4)}, {v(vT+1)}')
for half in range(2):
    for i in range(8): a(f'ds_read_b128 {v(rf+4*i,4)}, {v(vT+3)} offset:{(half*8+i)*64}')
    for i in range(8):
        ks = half*8 + i
        a(f's_waitcnt lgkmcnt({7-i})')
        for part, d in enumerate((fq, fk, fv)):
            w = ag(wfrag(ks, part), 4); fr = v(rf+4*i, 4)
            A, B = (w, fr) if part < 2 else (fr, w)
            a(f'v_mfma_f32_16x16x32_bf16 {v(d,4)}, {A}, {B}, {0 if ks == 0 else v(d,4)}')
for sh in (8, 4, 2, 1):
    for e in (0, 1): a(f'v_add_f32_dpp {v(fs+e)}, {v(fs+e)}, {v(fs+e)} row_ror:{sh} row_mask:0xf bank_mask:0xf')
ln_basic(fs, fs + 1, fs + 2, vT, fs + 3)
nq, nk, nv, ncq = rf, rf + 2, rf + 4, rf + 6
ln_tile(fq, fk, fv, fs + 2, None, None, nq, nk, nv, ncq, True)
a(f'''v_cmp_eq_u32 {mT}, {sQQ}, {v(vQ)}
s_lshr_b32 s0, {sQQ}, 2
v_cmp_eq_u32 vcc, s0, {v(vG)}
s_mov_b32 s1, 0xffff
s_bitcmp1_b32 {sQQ}, 0
s_cselect_b32 s0, 0xffff0000, s1
s_bitcmp1_b32 {sQQ}, 1
s_cselect_b32 s1, s0, 0
s_cselect_b32 s0, 0, s0''')
for tt in range(5):
    ln_ = a.newl('pt')
    a(f's_cmp_eq_u32 {sTT}, {tt}\ns_cbranch_scc0 {ln_}\ns_mov_b64 exec, {mT}')
    for h in range(2): a(f'v_mov_b32 {v(vQf+2*tt+h)}, {v(nq+h)}\nv_mov_b32 {v(vKf+2*tt+h)}, {v(nk+h)}')
    a(f'v_mov_b32 {v(cqr(tt))}, {v(ncq)}')
    for r in range(4): a(f'v_add_f32 {v(vRes+4*tt+r)}, {v(vRes+4*tt+r)}, {v(fy+r)}')
    a(f'''s_mov_b64 exec, vcc
v_bfi_b32 {v(vVf+2+2*tt)}, s0, {v(nv)}, {v(vVf+2+2*tt)}
v_bfi_b32 {v(vVf+3+2*tt)}, s1, {v(nv)}, {v(vVf+3+2*tt)}
s_mov_b64 exec, -1''')
    a.label(ln_)
a('s_branch L_attn')

a.label('L_final')
a(f's_lshr_b32 s0, {sWI}, 6\ns_cmp_eq_u32 s0, {sG}\ns_cbranch_scc0 L_done')
ya = y_gather(1)
a(f'''v_lshlrev_b32 {v(vT)}, 2, {v(vT)}
v_add_u32 {v(vT)}, {YF}, {v(vT)}
ds_write_b64 {v(vT)}, {v(ya,2)}''')
res_patch_addr()
a(f'''s_waitcnt lgkmcnt(0)
s_barrier
ds_read_b128 {v(fy,4)}, {v(vT+1)}
s_and_b32 s1, {sWI}, 63
s_lshr_b32 {sTT}, s1, 4
s_and_b32 {sQQ}, s1, 15
v_cmp_eq_u32 {mT}, {sQQ}, {v(vQ)}
s_waitcnt lgkmcnt(0)''')
for tt in range(1, 5):
    a(f's_cmp_eq_u32 {sTT}, {tt-1}\ns_cselect_b64 exec, {mT}, 0')
    for r in range(4): a(f'v_add_f32 {v(vRes+4*tt+r)}, {v(vRes+4*tt+r)}, {v(fy+r)}')
a('s_mov_b64 exec, -1')
out_store()
a.label('L_done')
if DEBUG:
    stamp('end')
    n = nstamp[0]
    a(f's_waitcnt lgkmcnt(0)\ns_lshl_b32 s0, s2, 2\ns_add_u32 s0, s0, {sW}\ns_lshl_b32 s0, s0, 6\ns_add_u32 s0, s0, {DBGS}\nv_mov_b32 {v(vT)}, 0')
    a(f'v_mov_b32 {v(vT+1)}, s100\nbuffer_store_dword {v(vT+1)}, {v(vT)}, {rWS}, s0 offen')
    for i in range(1, n):
        a(f's_sub_u32 s1, s{STAMP0+2*i}, s{STAMP0}\nv_mov_b32 {v(vT+1)}, s1\nbuffer_store_dword {v(vT+1)}, {v(vT)}, {rWS}, s0 offen offset:{4*i}')
a.label('L_end')
a('s_endpgm')

body = a.finish()
ref = open(f'cdna_kernels/{NAME}.s.ref').read().split('\n')
hdr = [l for l in ref if l.startswith(';') and '@launch' not in l]
text = '\n'.join(hdr) + f'''
; @launch grid=(256,1,1) block=(256,1,1) lds=163840
.amdgcn_target "amdgcn-amd-amdhsa--gfx950"
.text
.globl {NAME}_kernel
.p2align 8
.type {NAME}_kernel,@function
{NAME}_kernel:
{body}
.section .rodata,"a"
.p2align 6
.amdhsa_kernel {NAME}_kernel
  .amdhsa_next_free_vgpr 512
  .amdhsa_next_free_sgpr 102
  .amdhsa_accum_offset 256
  .amdhsa_group_segment_fixed_size 0
  .amdhsa_kernarg_size 88
  .amdhsa_user_sgpr_count 2
  .amdhsa_user_sgpr_kernarg_segment_ptr 1
  .amdhsa_system_sgpr_workgroup_id_x 1
.end_amdhsa_kernel
'''
open(OUT, 'w').write(text)
print('wrote', OUT, 'instructions', len(a.ins), 'nops added', a.nops, 'temps', NT, 'stamps', stamp.names)
```

```python
import sys
from asmlib import Asm

NAME = 'interleave_layers__sliding_local_dilated__moe_arch_mod__prompt'
def opt(name, default=None):
    for x in sys.argv[1:]:
        if x.startswith('--' + name + '='): return x.split('=', 1)[1]
    return default
DEBUG = opt('debug') is not None
DSEL = set((opt('debug') or '').split(','))
PROBE = opt('probe')
OUT = [a for a in sys.argv[1:] if not a.startswith('--')]
OUT = OUT[0] if OUT else f'cdna_kernels/{NAME}.s'

TA, TB = 0x10000, 0x290000
ST = 0x510000; ST_L = 32 * 10240
FL = 0x5B0000
RG = 0x5C0000; RG_L = 32 * 256
CA = 0x5C4000; CA_L = 32 * 1024
YP = 0x5D4000; YP_L = 44 * 1024
DBGS = 0x600000
WS_BYTES = 0x800000
IMG = 0; RING = 81920; OWN = 147456; MISC = 157696
SQ = MISC; VM = MISC + 1280; VC = MISC + 1600; AMX = MISC + 1920; FS = MISC + 1984
ROW = MISC + 2048; HB = ROW; YF = MISC + 3072; RED = MISC + 5120; T0P = RED
WDL = RING; WUL = RING; WGL = RING + 32768
NEG = 0xF149F2CA
SPIN = 200000

a = Asm()
sW, sM, sG, sP, sJ = 's3', 's4', 's5', 's6', 's7'
rX, rW, rWO, rWS, rWG, rWU, rWD, rOUT = ('s[8:11]', 's[12:15]', 's[16:19]', 's[20:23]', 's[24:27]', 's[28:31]', 's[32:35]', 's[36:39]')
pDBG, pWR = 's[40:41]', 's[42:43]'
mDIAG, mQ1, mQ2 = 's[44:45]', 's[46:47]', 's[48:49]'
sSW = 's50'
sBR, sBL, sBS, sBN = 's51', 's52', 's53', 's54'
sWR, sWI = 's55', 's56'
sCNT = 's57'
sT = [f's{i}' for i in range(58, 70)]
mT = 's[70:71]'
STAMP0 = 72
_vn = [0]
def V(n=1, al=1):
    while _vn[0] % al: _vn[0] += 1
    b = _vn[0]; _vn[0] += n
    assert _vn[0] <= 256, 'out of VGPRs'
    return b
def v(i, n=1): return f'v{i}' if n == 1 else f'v[{i}:{i+n-1}]'
def ag(i, n=1): return f'a{i}' if n == 1 else f'a[{i}:{i+n-1}]'
vLane = V(); vQ = V(); vG = V()
vL16 = V(); vL16b = V()
vDmaA = V(); vDmaB = V()
vPubG = V(); vPubL = V()
vSQ = V(); vVS = V()
vOwnR = V()
vStP = V(); vStG = V(); vStW = V(); vStV = V()
vFlag = V()
vMc = V(2, 2)
vBc = V(4, 2); vBp = V(4, 2); vBp1 = V(4, 2)
vCsQ = V(4, 2); vCsK = V(4, 2); vCsV = V(2, 2)
vLf = V(8, 2)
vOnes = V(4, 2)
vRes = V(20, 2)
vWd = V(32, 2)
vQf = V(10, 2); vKf = V(10, 2); vVf = V(12, 2)
vFr = V(52, 2)
vAcc = V(60, 2)
assert vAcc == vFr + 52
vT = V(256 - _vn[0])
NT = 256 - vT
def acc(tt, part): return vAcc + (tt * 3 + part) * 4
def wfrag(ks, part): return (ks * 3 + part) * 4
def wofrag(ks): return 192 + ks * 4
TILE_ORD = [1, 2, 3, 4, 0]

nstamp = [0]
def stamp(name, shared=False):
    names = [name + '0', name + '1'] if shared else [name]
    for p, nm in enumerate(names):
        want = (DEBUG and (nm in DSEL or nm in ('start', 'end'))) or PROBE == nm
        if not want: continue
        l = None
        if shared:
            l = a.newl('st'); a(f's_cmp_eq_u32 {sP}, {p}\ns_cbranch_scc0 {l}')
        if PROBE == nm: a('s_memrealtime s[98:99]')
        else:
            i = nstamp[0]; nstamp[0] += 1
            assert STAMP0 + 2 * i + 1 <= 99
            a(f's_memtime s[{STAMP0+2*i}:{STAMP0+2*i+1}]')
            stamp.names.append(nm)
        if l: a.label(l)
stamp.names = []

def srd(dst, lo, hi, nbytes):
    d = int(dst[2:dst.index(':')])
    a(f's_mov_b32 s{d}, {lo}\ns_and_b32 s{d+1}, {hi}, 0xffff\ns_mov_b32 s{d+2}, {nbytes}\ns_mov_b32 s{d+3}, 0x20000')

def interleave(mf, fill, per=2):
    for pre, text in mf:
        if pre: pre()
        a(text)
        for _ in range(per):
            if fill:
                t, tag = fill.pop(0); a(t, tag)
def drain(fill):
    while fill:
        t, tag = fill.pop(0); a(t, tag)

def poll_begin():
    l = a.newl('poll'); a(f's_mov_b32 {sCNT}, 0'); a.label(l); return l
def poll_end(l):
    a(f's_add_u32 {sCNT}, {sCNT}, 1\ns_cmp_gt_u32 {sCNT}, {SPIN}\ns_cbranch_scc1 L_end\ns_cbranch_vccnz {l}')

a(f's_cmp_ge_u32 s2, 256\ns_cbranch_scc1 L_end')
stamp('start')
a('s_load_dwordx16 s[52:67], s[0:1], 0')
a('s_load_dwordx4 s[68:71], s[0:1], 64')
a('s_load_dwordx2 s[44:45], s[0:1], 80')
if DEBUG: a('s_memrealtime s[46:47]')
t0, t1, t2, t3, t4, t5, t6, t7 = [vFr + i for i in range(8)]
a(f'''v_lshrrev_b32 {v(t0)}, 6, v0
v_and_b32 {v(vLane)}, 63, v0
s_and_b32 {sG}, s2, 7
v_readfirstlane_b32 {sW}, {v(t0)}
s_lshl_b32 {sG}, {sG}, 2
s_lshr_b32 {sM}, s2, 6
s_add_u32 {sG}, {sG}, {sM}
s_lshr_b32 {sM}, s2, 3
s_and_b32 {sM}, {sM}, 7
v_and_b32 {v(vQ)}, 15, {v(vLane)}
v_lshrrev_b32 {v(vG)}, 4, {v(vLane)}
v_lshlrev_b32 {v(vL16)}, 4, {v(vLane)}''')
vXs0, vXs1, vWs0, vWs1, vOs0, vOs1, vXr0, vXr1, vXr2, vXr3, vTrW, vTrO, vSt0, vSt1, vSt2, vSt3, vStz = [vWd + i for i in range(17)]
a(f'''v_lshrrev_b32 {v(t0)}, 3, {v(vLane)}
v_and_b32 {v(t1)}, 7, {v(vLane)}
s_and_b32 s8, {sW}, 1
s_lshl_b32 s9, s8, 2
v_xor_b32 {v(t2)}, {v(t1)}, {v(vG)}
v_xor_b32 {v(t2)}, s9, {v(t2)}
v_lshlrev_b32 {v(t2)}, 4, {v(t2)}
v_lshl_add_u32 {v(vXs0)}, {v(t0)}, 11, {v(t2)}
v_xor_b32 {v(vXs1)}, 64, {v(vXs0)}''')
a(f'''v_and_b32 {v(t2)}, 1, {v(vG)}
v_lshlrev_b32 {v(t2)}, 1, {v(t2)}
v_xor_b32 {v(t2)}, {v(t1)}, {v(t2)}
v_lshlrev_b32 {v(t2)}, 4, {v(t2)}
s_lshl_b32 s9, {sM}, 7
v_add_u32 {v(t2)}, s9, {v(t2)}
s_lshl_b32 s9, {sW}, 4
v_add_u32 {v(t3)}, s9, {v(t0)}
v_mul_u32_u24 {v(t4)}, 3072, {v(t3)}
v_add_u32 {v(vWs0)}, {v(t4)}, {v(t2)}
v_xor_b32 {v(t5)}, 64, {v(t2)}
v_add_u32 {v(t4)}, {8*3072}, {v(t4)}
v_add_u32 {v(vWs1)}, {v(t4)}, {v(t5)}
v_lshl_add_u32 {v(vOs0)}, {v(t3)}, 10, {v(t2)}
v_lshl_add_u32 {v(vOs1)}, {v(t3)}, 10, {v(t5)}
v_add_u32 {v(vOs1)}, {8*1024 - 1024}, {v(vOs1)}''')
a('s_waitcnt lgkmcnt(0)')
srd(rX, 's52', 's53', 0x200000)
srd(rW, 's54', 's55', 0x180000)
srd(rWS, 's44', 's45', WS_BYTES)
sXrow, sXl, sXo = sT[8], sT[9], sT[10]
srd(rWO, 's56', 's57', 0x80000)
srd(rWG, 's62', 's63', 512 * 2752)
srd(rWU, 's64', 's65', 512 * 2752)
srd(rWD, 's66', 's67', 1376 * 1024)
srd(rOUT, 's68', 's69', 0x200000)
a(f's_mov_b64 {pDBG}, s[70:71]\ns_mov_b64 {pWR}, s[60:61]')
if DEBUG: a(f's_mov_b32 s100, s46')

vm1 = vFr + 8
a(f'''v_mov_b32 {v(vm1)}, -1
v_mov_b32 {v(vm1+1)}, -1
v_mov_b32 {v(vm1+2)}, -1
v_mov_b32 {v(vm1+3)}, -1
s_mul_i32 {sT[0]}, {sG}, 10240
s_mul_i32 {sT[1]}, {sM}, 1280
s_add_u32 {sT[0]}, {sT[0]}, {sT[1]}
s_add_u32 {sT[0]}, {sT[0]}, {ST}''')
a(f'''s_add_u32 {sT[1]}, {sG}, 32
s_cmp_lt_u32 {sG}, 11
s_cselect_b32 {sT[1]}, {sT[1]}, -1
s_cmp_eq_u32 {sM}, 5
s_cselect_b32 {sJ}, {sT[1]}, -1
s_cmp_eq_u32 {sM}, 1
s_cselect_b32 {sJ}, {sG}, {sJ}''')
lc2, lc3, lcd = a.newl('c2'), a.newl('c3'), a.newl('cd')
a.track = False
a(f'''s_cmp_ge_u32 {sW}, 2
s_cbranch_scc1 {lc2}
s_mul_i32 {sT[1]}, {sW}, {ST_L + 256}
s_add_u32 {sT[1]}, {sT[1]}, {sT[0]}
buffer_store_dwordx4 {v(vm1,4)}, {v(vL16)}, {rWS}, {sT[1]} offen sc1
s_branch {lcd}''')
a.label(lc2)
a(f'''s_cmp_eq_u32 {sW}, 3
s_cbranch_scc1 {lc3}''')
a(f'''s_add_u32 {sT[1]}, {sT[0]}, 1024
v_add_u32 {v(t2)}, {sT[1]}, {v(vL16)}
s_lshl_b32 {sT[1]}, {sG}, 10
s_lshl_b32 {sT[2]}, {sM}, 7
s_add_u32 {sT[1]}, {sT[1]}, {sT[2]}
s_add_u32 {sT[1]}, {sT[1]}, {CA}
v_and_b32 {v(t3)}, 1, {v(t0)}
v_mul_u32_u24 {v(t3)}, {CA_L}, {v(t3)}
v_lshl_add_u32 {v(t3)}, {v(t1)}, 4, {v(t3)}
v_add_u32 {v(t3)}, {sT[1]}, {v(t3)}
v_cmp_eq_u32 vcc, 1, {v(vG)}
v_cndmask_b32 {v(t2)}, {v(t2)}, {v(t3)}, vcc
s_lshl_b32 {sT[1]}, {sG}, 11
s_add_u32 {sT[1]}, {sT[1]}, {FL - 4 * 256}
v_lshlrev_b32 {v(t3)}, 8, {v(t0)}
v_lshl_add_u32 {v(t3)}, {v(t1)}, 4, {v(t3)}
v_add_u32 {v(t3)}, {sT[1]}, {v(t3)}
v_cmp_lt_u32 vcc, 1, {v(vG)}
v_cndmask_b32 {v(t2)}, {v(t2)}, {v(t3)}, vcc
s_cmp_eq_u32 {sM}, 0
s_cselect_b32 exec_hi, -1, 0
buffer_store_dwordx4 {v(vm1,4)}, {v(t2)}, {rWS}, 0 offen sc1
s_mov_b64 exec, -1
s_cbranch_scc0 {lcd}
s_lshl_b32 {sT[1]}, {sG}, 8
s_add_u32 {sT[1]}, {sT[1]}, {RG}
v_mul_u32_u24 {v(t3)}, {RG_L}, {v(vLane)}
s_mov_b64 exec, 3
buffer_store_dwordx4 {v(vm1,4)}, {v(t3)}, {rWS}, {sT[1]} offen sc1
s_mov_b64 exec, -1
s_branch {lcd}''')
a.label(lc3)
a(f'''s_cmp_lt_i32 {sJ}, 0
s_cbranch_scc1 {lcd}
s_lshl_b32 {sT[1]}, {sJ}, 10
s_add_u32 {sT[1]}, {sT[1]}, {YP}
buffer_store_dwordx4 {v(vm1,4)}, {v(vL16)}, {rWS}, {sT[1]} offen sc1
s_add_u32 {sT[1]}, {sT[1]}, {YP_L}
buffer_store_dwordx4 {v(vm1,4)}, {v(vL16)}, {rWS}, {sT[1]} offen sc1''')
a.label(lcd)
a.track = True

a(f'''s_and_b32 {sXrow}, {sG}, 15
s_lshl_b32 {sXrow}, {sXrow}, 6
s_and_b32 {sT[1]}, {sW}, 1
s_mul_i32 {sT[2]}, {sT[1]}, 40
s_add_u32 {sXrow}, {sXrow}, {sT[2]}
s_sub_i32 {sXrow}, {sXrow}, 16
s_lshr_b32 {sT[2]}, {sW}, 1
s_mul_i32 {sXl}, {sT[2]}, 10240
s_mul_i32 {sT[3]}, {sT[1]}, 5120
s_add_u32 {sXl}, {sXl}, {sT[3]}
s_add_u32 {sXo}, {sT[2]}, {sM}
s_cmp_eq_u32 {sT[1]}, 0
s_cselect_b32 s70, 0xffffff00, -1
s_mov_b32 s71, -1
s_lshr_b32 {sT[4]}, {sG}, 4
s_lshl_b32 {sT[4]}, {sT[4]}, 10''')
sXr = [sT[3], sT[5], sT[6], sT[7], sT[11]]
for j in range(5):
    a(f'''s_add_i32 {sT[2]}, {sXrow}, {8*j}
s_max_i32 {sT[2]}, {sT[2]}, 0
s_lshl_b32 {sT[2]}, {sT[2]}, 11''')
    a(f's_add_u32 {sXr[j]}, {sT[2]}, {sT[4]}')
def x_issue(aa):
    f = [(f's_add_u32 {sT[1]}, {sXo}, {2*aa}', None), (f's_and_b32 {sT[1]}, {sT[1]}, 7', None), (f's_lshl_b32 {sT[1]}, {sT[1]}, 7', None)]
    for j in range(5):
        f.append((f's_add_u32 m0, {sXl}, {aa*20480 + j*1024}', None))
        f.append((f's_add_u32 {sT[2]}, {sT[1]}, {sXr[j]}', None))
        if j == 0: f.append((f's_mov_b64 exec, {mT}', None))
        f.append((f'buffer_load_dwordx4 {v(vXs1 if j & 1 else vXs0)}, {rX}, {sT[2]} offen lds', f'X{aa}'))
        if j == 0: f.append(('s_mov_b64 exec, -1', None))
    return f
sWl = sXrow
a(f's_mul_i32 {sWl}, {sW}, 6144\ns_add_u32 {sWl}, {sWl}, {RING}')
def w_issue(c):
    f = [(f's_add_u32 {sT[1]}, {sM}, {c}', None), (f's_and_b32 {sT[1]}, {sT[1]}, 7', None), (f's_mul_i32 {sT[1]}, {sT[1]}, {64*3072}', None)]
    for h in range(2):
        f.append((f's_add_u32 m0, {sWl}, {(c % 3) * 24576 + h * 3072}', None))
        for part in range(3):
            f.append((f'buffer_load_dwordx4 {v(vWs1 if h else vWs0)}, {rW}, {sT[1]} offen offset:{part*1024} lds', f'W{c}'))
    return f
def wo_issue(c):
    return [(f's_add_u32 {sT[1]}, {sM}, {c}', None), (f's_and_b32 {sT[1]}, {sT[1]}, 7', None), (f's_lshl_b32 {sT[1]}, {sT[1]}, 16', None),
            (f's_lshl_b32 {sT[2]}, {sW}, 11', None), (f's_add_u32 m0, {sT[2]}, {c*8192}', None),
            (f'buffer_load_dwordx4 {v(vOs0)}, {rWO}, {sT[1]} offen lds', 'WO'),
            (f'buffer_load_dwordx4 {v(vOs1)}, {rWO}, {sT[1]} offen offset:1024 lds', 'WO')]
drain(x_issue(0)); drain(x_issue(1))
vWr = vAcc
a(f'''s_lshl_b32 {sT[1]}, {sM}, 7
v_lshl_add_u32 {v(t2)}, {v(vG)}, 4, {sT[1]}''')
a(f'global_load_dwordx4 {v(vLf,4)}, {v(t2)}, {pWR}', 'WR')
a(f'global_load_dwordx4 {v(vLf+4,4)}, {v(t2)}, {pWR} offset:64', 'WR')
a(f'global_load_dwordx4 {v(vWr,4)}, {v(vL16)}, {pWR}', 'WR')

for i in range(4): a(f'v_mov_b32 {v(vOnes+i)}, 0x3f803f80')
a(f'''v_mul_u32_u24 {v(t2)}, 10240, {v(t0)}
v_lshl_add_u32 {v(t2)}, {v(t1)}, 4, {v(t2)}''')
a(f'ds_write_b128 {v(t2)}, {v(vOnes,4)}', 'ones')
a(f'''v_add_u32 {v(vL16b)}, 65536, {v(vL16)}
v_lshrrev_b32 {v(t2)}, 1, {v(vQ)}
v_xor_b32 {v(t3)}, {v(vG)}, {v(t2)}
v_lshlrev_b32 {v(t3)}, 4, {v(t3)}
v_lshl_add_u32 {v(vXr0)}, {v(vQ)}, 7, {v(t3)}
v_xor_b32 {v(vXr1)}, 64, {v(vXr0)}
v_add_u32 {v(vXr2)}, 40960, {v(vXr0)}
v_add_u32 {v(vXr3)}, 40960, {v(vXr1)}
s_add_u32 {sT[1]}, {sW}, 1
s_lshl_b32 {sT[1]}, {sT[1]}, 11
v_add_u32 {v(vSt0)}, {sT[1]}, {v(vXr0)}
v_add_u32 {v(vSt1)}, {sT[1]}, {v(vXr1)}
v_add_u32 {v(vSt2)}, {sT[1]}, {v(vXr2)}
v_add_u32 {v(vSt3)}, {sT[1]}, {v(vXr3)}
s_lshr_b32 {sT[1]}, {sW}, 1
s_mul_i32 {sT[1]}, {sT[1]}, 10240
s_and_b32 {sT[2]}, {sW}, 1
s_lshl_b32 {sT[2]}, {sT[2]}, 6
v_xor_b32 {v(vStz)}, {sT[2]}, {v(vXr0)}
v_add_u32 {v(vStz)}, {sT[1]}, {v(vStz)}''')
a(f'''v_lshrrev_b32 {v(t2)}, 2, {v(vQ)}
v_lshrrev_b32 {v(t3)}, 3, {v(vQ)}
v_and_b32 {v(t4)}, 1, {v(vG)}
v_lshl_or_b32 {v(t3)}, {v(t4)}, 1, {v(t3)}
v_xor_b32 {v(t3)}, {sW}, {v(t3)}
v_lshlrev_b32 {v(t3)}, 5, {v(t3)}
v_lshl_add_u32 {v(t3)}, {v(t2)}, 7, {v(t3)}
v_and_b32 {v(t4)}, 3, {v(vLane)}
v_lshl_add_u32 {v(t3)}, {v(t4)}, 3, {v(t3)}
v_mul_u32_u24 {v(t4)}, 3072, {v(vG)}
v_add_u32 {v(t4)}, {RING}, {v(t4)}
v_add_u32 {v(vTrW)}, {v(t4)}, {v(t3)}
v_lshl_add_u32 {v(vTrO)}, {v(vG)}, 10, {v(t3)}''')
a(f'''v_cmp_eq_u32 {mDIAG}, {v(t2)}, {v(vG)}
v_and_b32 {v(t3)}, 1, {v(vLane)}
v_cmp_eq_u32 {mQ1}, 1, {v(t3)}
v_and_b32 {v(t3)}, 2, {v(vLane)}
v_cmp_eq_u32 {mQ2}, 2, {v(t3)}''')
a(f'''v_lshlrev_b32 {v(t2)}, 2, {v(vG)}
v_sub_u32 {v(t2)}, {v(vQ)}, {v(t2)}
v_mov_b32 {v(t3)}, {NEG:#x}
s_and_b32 {sT[1]}, {sG}, 15
s_cmp_eq_u32 {sT[1]}, 0
s_cselect_b64 s[0:1], -1, 0''')
for r in range(4):
    a(f'''v_subrev_u32 {v(t4)}, {r}, {v(t2)}
v_cmp_gt_u32 vcc, 8, {v(t4)}
v_cndmask_b32 {v(vBc+r)}, {v(t3)}, 0, vcc
v_cmp_gt_i32 vcc, -8, {v(t4)}
v_cndmask_b32 {v(vBp+r)}, {v(t3)}, 0, vcc
v_cndmask_b32 {v(vBp1+r)}, {v(vBp+r)}, {v(t3)}, s[0:1]
v_cmp_le_i32 vcc, 0, {v(t4)}''')
    if r % 2 == 0: a(f'v_mov_b32 {v(t5)}, 0xffff\nv_cndmask_b32 {v(vMc + r//2)}, 0, {v(t5)}, vcc')
    else: a(f'v_mov_b32 {v(t5)}, 0xffff0000\nv_cndmask_b32 {v(t5)}, 0, {v(t5)}, vcc\nv_or_b32 {v(vMc + r//2)}, {v(vMc + r//2)}, {v(t5)}')
a(f'''s_mul_i32 {sT[1]}, {sG}, 81920
s_lshl_b32 {sT[2]}, {sW}, 1
s_add_u32 {sT[2]}, {sT[2]}, {sM}
s_and_b32 s0, {sT[2]}, 7
s_lshl_b32 s0, s0, 11
s_add_u32 s0, s0, {sT[1]}
v_add_u32 {v(vDmaA)}, s0, {v(vL16)}
s_add_u32 {sT[2]}, {sT[2]}, 1
s_and_b32 s0, {sT[2]}, 7
s_lshl_b32 s0, s0, 11
s_add_u32 s0, s0, {sT[1]}
s_add_u32 s0, s0, {4096 - 2048}
v_add_u32 {v(vDmaB)}, s0, {v(vL16)}
v_add_u32 {v(vDmaA)}, 4096, {v(vDmaA)}''')
a(f'''v_lshrrev_b32 {v(t2)}, 1, {v(vG)}
v_lshlrev_b32 {v(t2)}, 8, {v(t2)}
v_lshl_add_u32 {v(t2)}, {v(vQ)}, 4, {v(t2)}
s_lshl_b32 {sT[2]}, {sW}, 9
v_add_u32 {v(t2)}, {sT[2]}, {v(t2)}
v_and_b32 {v(t3)}, 1, {v(vG)}
v_lshl_add_u32 {v(vPubL)}, {v(t3)}, 11, {v(t2)}
v_add_u32 {v(vPubL)}, {OWN}, {v(vPubL)}
v_lshl_add_u32 {v(vPubG)}, {v(t3)}, 14, {v(t2)}
s_lshl_b32 {sT[2]}, {sM}, 11
s_add_u32 {sT[2]}, {sT[2]}, {sT[1]}
v_add_u32 {v(vPubG)}, {sT[2]}, {v(vPubG)}
v_lshlrev_b32 {v(t2)}, 4, {v(vQ)}
v_add_u32 {v(vSQ)}, {SQ}, {v(t2)}
v_lshlrev_b32 {v(t3)}, 4, {v(vG)}
v_add_u32 {v(vVS)}, {VM}, {v(t3)}
s_add_u32 {sT[2]}, {sW}, 1
s_lshl_b32 s0, {sT[2]}, 11
s_add_u32 s0, s0, {OWN}
v_add_u32 {v(vOwnR)}, s0, {v(vL16)}
s_lshl_b32 s0, {sT[2]}, 8
s_add_u32 s1, s0, {sT[0]}
v_add_u32 {v(vStP)}, s1, {v(t2)}''')
a(f'''v_mov_b32 {v(t3)}, s0
v_cmp_gt_u32 vcc, 2, {v(vG)}
v_cndmask_b32 {v(t3)}, 0, {v(t3)}, vcc
v_add_u32 {v(t3)}, {v(t3)}, {v(t2)}
v_add_u32 {v(vStW)}, {SQ}, {v(t3)}
v_lshrrev_b32 {v(t4)}, 2, {v(t3)}
v_add_u32 {v(vStV)}, {VM}, {v(t4)}
v_and_b32 {v(t4)}, 1, {v(vG)}
v_mul_u32_u24 {v(t4)}, 5120, {v(t4)}
s_mul_i32 s1, {sG}, 10240
s_add_u32 s1, s1, {ST}
v_add3_u32 {v(vStG)}, {v(t3)}, {v(t4)}, s1
v_and_b32 {v(t3)}, 31, {v(vLane)}
v_lshlrev_b32 {v(t3)}, 2, {v(t3)}
s_lshl_b32 s1, {sG}, 11
s_add_u32 s1, s1, {FL}
v_add_u32 {v(vFlag)}, s1, {v(t3)}
v_mov_b32 {v(vVf)}, 0
v_mov_b32 {v(vVf+1)}, 0
s_mov_b32 {sP}, 0''')
stamp('prolog')

sS1, sS2, zS1, zS2 = vQf, vQf + 4, vKf, vKf + 4
for aa in range(4):
    a.wait(vm=f'X{aa}', lg='all')
    a('s_barrier')
    if aa == 0:
        lg_ = a.newl('go')
        a.track = False
        a(f'''s_cmp_eq_u32 {sM}, 0
s_cbranch_scc0 {lg_}
s_cmp_eq_u32 {sW}, 2
s_cbranch_scc0 {lg_}
s_lshl_b32 s0, {sG}, 3
v_mov_b32 {v(vT)}, s0
v_mov_b32 {v(vT+1)}, 1
s_mov_b64 exec, 1
global_store_dword {v(vT)}, {v(vT+1)}, {pDBG} sc1
s_mov_b64 exec, -1''')
        a.label(lg_)
        a.track = True
    for i in range(4):
        base = (vSt0, vSt1, vSt2, vSt3)[(i & 1) + (2 if aa >= 2 else 0)]
        a(f'ds_read_b128 {v(vFr+4*i,4)}, {v(base)} offset:{(2*(aa&1) + (i>>1))*10240}', f'S{i}')
    a(f'ds_read_b128 {v(vFr+16,4)}, {v(vStz)} offset:{aa*20480}', 'S4')
    if aa == 0:
        a(f'''v_lshrrev_b32 {v(vT)}, 1, {v(vG)}
s_lshl_b32 s0, {sW}, 1
v_add_u32 {v(vT)}, s0, {v(vT)}
v_lshrrev_b32 {v(vT+1)}, 1, {v(vQ)}
v_xor_b32 {v(vT)}, {v(vT)}, {v(vT+1)}
v_lshlrev_b32 {v(vT)}, 4, {v(vT)}
v_lshl_add_u32 {v(vT)}, {v(vQ)}, 7, {v(vT)}
v_and_b32 {v(vT+1)}, 1, {v(vG)}
v_lshl_add_u32 {v(vT)}, {v(vT+1)}, 3, {v(vT)}''')
        for tt in range(5):
            a(f'ds_read_b64 {v(vRes+4*tt+2,2)}, {v(vT)} offset:{tt*2048}', 'R')
    fill = x_issue(aa + 2) if aa < 2 else w_issue(aa - 2)
    drain(fill)
    mf = []
    for i in range(5):
        s1, s2 = (sS1, sS2) if i < 4 else (zS1, zS2)
        first = aa == 0 and i in (0, 4)
        fr = v(vFr + 4*i, 4)
        mf.append(((lambda i=i: a.wait(lg=f'S{i}')), f'v_mfma_f32_16x16x32_bf16 {v(s1,4)}, {v(vOnes,4)}, {fr}, {0 if first else v(s1,4)}'))
        mf.append((None, f'v_mfma_f32_16x16x32_bf16 {v(s2,4)}, {fr}, {fr}, {0 if first else v(s2,4)}'))
    interleave(mf, [])
    if aa == 0:
        a.wait(lg='R')
        for tt in range(5):
            b = vRes + 4*tt
            a(f'''v_lshlrev_b32 {v(b)}, 16, {v(b+2)}
v_and_b32 {v(b+1)}, 0xffff0000, {v(b+2)}
v_lshlrev_b32 {v(b+2)}, 16, {v(b+3)}
v_and_b32 {v(b+3)}, 0xffff0000, {v(b+3)}''')
    if aa == 1:
        a.wait(vm='WR')
        for i in range(8): a(f'v_cndmask_b32 {v(vLf+i)}, {v(vOnes)}, {v(vLf+i)}, {mQ1}')
        a(f'v_mfma_f32_16x16x32_bf16 {v(vWr+4,4)}, {v(vOnes,4)}, {v(vWr,4)}, 0')
        for sh in (8, 4, 2, 1):
            a(f'v_add_f32_dpp {v(vWr+4)}, {v(vWr+4)}, {v(vWr+4)} row_ror:{sh} row_mask:0xf bank_mask:0xf')
        a(f'v_readfirstlane_b32 {sSW}, {v(vWr+4)}')
stamp('xdone')

def diag_select(dst, src):
    a(f'''v_cndmask_b32 {v(dst)}, {v(src)}, {v(src+1)}, {mQ1}
v_cndmask_b32 {v(src+2)}, {v(src+2)}, {v(src+3)}, {mQ1}
v_cndmask_b32 {v(dst)}, {v(dst)}, {v(src+2)}, {mQ2}''')
def ln_basic(s1, s2, negm, var, rstd):
    a(f'''v_mul_f32 {v(negm)}, 0xbb000000, {v(s1)}
v_mul_f32 {v(rstd)}, {v(negm)}, {v(negm)}
v_mul_f32 {v(var)}, 0x3b000000, {v(s2)}
v_sub_f32 {v(var)}, {v(var)}, {v(rstd)}
v_max_f32 {v(var)}, 0, {v(var)}
v_add_f32 {v(rstd)}, 0x3727c5ac, {v(var)}
v_rsq_f32 {v(rstd)}, {v(rstd)}''')
diag_select(sS1 + 1, sS2)
diag_select(zS1 + 1, zS2)
ln_basic(sS1, sS1 + 1, vT, vT + 2, vT + 1)
a(f'''s_lshl_b32 s0, {sW}, 7
s_add_u32 s0, s0, {T0P}
v_lshl_add_u32 {v(vT+3)}, {v(vQ)}, 3, s0
s_add_u32 s1, {sW}, 1
s_lshl_b32 s0, s1, 8
v_add_u32 {v(vT+4)}, s0, {v(vSQ)}
s_lshl_b32 s0, s1, 6
s_add_u32 s0, s0, {VM}
v_lshl_add_u32 {v(vT+5)}, {v(vQ)}, 2, s0
s_mov_b64 exec, {mDIAG}''')
a(f'ds_write_b64 {v(vT+3)}, {v(zS1,2)}', 'sw')
a(f'ds_write_b64 {v(vT+4)}, {v(vT,2)}', 'sw')
a(f'ds_write2_b32 {v(vT+5)}, {v(vT)}, {v(vT+1)} offset0:0 offset1:80', 'sw')
a('s_mov_b64 exec, -1')

DEFER = 9
def xread(n, tt):
    c, s = n >> 1, n & 1
    base = (vXr0, vXr1, vXr2, vXr3)[s + (2 if c >= 4 else 0)]
    return (f'ds_read_b128 {v(vFr + (n & 1)*20 + 4*tt, 4)}, {v(base)} offset:{(c & 3)*10240 + tt*2048}', f'x{n}')
def trread(n):
    c, s = n >> 1, n & 1
    return [(f'ds_read_b64_tr_b16 {ag(wfrag(n, part) + 2*hh, 2)}, {v(vTrW)} offset:{(c % 3)*24576 + s*12288 + part*1024 + hh*512}', f'w{n}')
            for part in range(3) for hh in range(2)]
def qkv_mfma(tt, part, ks, fr, first):
    d = v(acc(tt, part), 4); w = ag(wfrag(ks, part), 4)
    A, B = (w, fr) if part < 2 else (fr, w)
    return f'v_mfma_f32_16x16x32_bf16 {d}, {A}, {B}, {0 if first else d}'
fill = []
def stage_w(c):
    def f():
        drain(fill)
        a.wait(vm=f'W{c}', lg='all')
        a('s_barrier')
        if c == 7: stamp('w7')
        fill.extend(trread(2*c)); fill.extend(trread(2*c + 1))
        if c + 2 <= 7: fill.extend(w_issue(c + 2))
        if c == 5:
            for i in range(6): fill.extend(wo_issue(i))
        if c >= 6: fill.extend(wo_issue(c))
        if c == 0:
            a(f'v_lshlrev_b32 {v(vT+3)}, 3, {v(vQ)}\nv_add_u32 {v(vT+3)}, {T0P}, {v(vT+3)}')
            for i in range(4): a(f'ds_read_b64 {v(vQf+2*i,2)}, {v(vT+3)} offset:{128*i}', 'z')
    return f
drain([xread(0, tt) for tt in range(5)])
stage_w(0)()
drain(fill)
stamp('w0')
a.wait(lg='z')
a(f'''v_pk_add_f32 {v(vQf,2)}, {v(vQf,2)}, {v(vQf+2,2)}
v_pk_add_f32 {v(vQf+4,2)}, {v(vQf+4,2)}, {v(vQf+6,2)}
v_pk_add_f32 {v(vQf,2)}, {v(vQf,2)}, {v(vQf+4,2)}''')
ln_basic(vQf, vQf + 1, vT, vT + 2, vT + 1)
a(f'v_lshlrev_b32 {v(vT+5)}, 2, {v(vQ)}\nv_add_u32 {v(vT+5)}, {VM}, {v(vT+5)}')
a(f'ds_write_b64 {v(vSQ)}, {v(vT,2)}', 'sw')
a(f'ds_write2_b32 {v(vT+5)}, {v(vT)}, {v(vT+1)} offset0:0 offset1:80', 'sw')
mf = []
for n in range(16):
    for tt in range(5):
        for part in range(3):
            pos = n * 15 + tt * 3 + part
            pres = []
            if tt == 0 and part == 0:
                def blk(n=n):
                    while any(tag in (f'x{n}', f'w{n}') for _, tag in fill):
                        t, tag = fill.pop(0); a(t, tag)
                    a.wait(lg=[f'x{n}', f'w{n}'])
                    if n + 1 < 16:
                        xs = [xread(n + 1, t2_) for t2_ in range(5)]
                        fill[0:0] = xs
                pres.append(blk)
            if (pos + DEFER) % 30 == 0 and (pos + DEFER) // 30 <= 7: pres.append(stage_w((pos + DEFER) // 30))
            pre = (lambda ps=pres: [p() for p in ps]) if pres else None
            mf.append((pre, qkv_mfma(tt, part, n, v(vFr + (n & 1)*20 + 4*tt, 4), n == 0)))
interleave(mf, fill)
drain(fill)
for r in range(4):
    a(f'v_mov_b32_dpp {v(vCsQ+r)}, {v(acc(0,0)+r)} row_newbcast:0 row_mask:0xf bank_mask:0xf')
    a(f'v_mov_b32_dpp {v(vCsK+r)}, {v(acc(0,1)+r)} row_newbcast:0 row_mask:0xf bank_mask:0xf')
a(f'''v_mov_b32 {v(vCsV)}, {v(acc(0,2))}
v_mov_b32 {v(vCsV+1)}, {v(acc(0,2))}
v_permlane16_swap_b32 {v(vCsV)}, {v(vCsV+1)}
v_mov_b32 {v(vCsV+1)}, {v(vCsV)}
v_permlane32_swap_b32 {v(vCsV)}, {v(vCsV+1)}''')
stamp('gemm1')
def ffn_w_addr():
    a(f'''v_lshrrev_b32 {v(vT)}, 2, {v(vLane)}
s_lshl_b32 s0, {sW}, 7
v_add_u32 {v(vT)}, s0, {v(vT)}
v_mul_u32_u24 {v(vT)}, 2752, {v(vT)}
v_and_b32 {v(vT+1)}, 3, {v(vLane)}
v_and_b32 {v(vT+2)}, 2, {v(vG)}
v_xor_b32 {v(vT+1)}, {v(vT+1)}, {v(vT+2)}
v_lshl_add_u32 {v(vT)}, {v(vT+1)}, 4, {v(vT)}
s_lshl_b32 s0, {sJ}, 6
s_lshl_b32 s1, {sW}, 13''')
def ffn_gu_issue(rsrc, ldsbase):
    ffn_w_addr()
    for i in range(8):
        a(f's_add_u32 m0, s1, {ldsbase + i*1024}')
        a(f'buffer_load_dwordx4 {v(vT)}, {rsrc}, s0 offen lds')
        if i < 7: a(f's_add_u32 s0, s0, {16*2752}')

a.wait(vm=None, lg='all')
a.label('L_epi')
vSm = vFr
vVm = vFr + 10
vVc = vFr + 30
def cqr(tt): return vSm + 2*tt + 1
for tt in range(5):
    a(f'ds_read_b64 {v(vSm+2*tt,2)}, {v(vSQ)} offset:{tt*256}', f'e{tt}')
    a(f'ds_read_b128 {v(vVm+4*tt,4)}, {v(vVS)} offset:{tt*64}', f'e{tt}')
    a(f'ds_read_b128 {v(vVc+4*tt,4)}, {v(vVS)} offset:{320 + tt*64}', f'e{tt}')
def ln_tile(aq, ak, av, sm, vm_, vc_, qf, kf, vf, cq, bc):
    for h in range(2):
        a(f'v_pk_fma_f32 {v(aq+2*h,2)}, {v(vCsQ+2*h,2)}, {v(sm,2)}, {v(aq+2*h,2)} op_sel_hi:[1,0,1]')
        a(f'v_pk_fma_f32 {v(ak+2*h,2)}, {v(vCsK+2*h,2)}, {v(sm,2)}, {v(ak+2*h,2)} op_sel_hi:[1,0,1]')
        if bc: a(f'v_pk_fma_f32 {v(av+2*h,2)}, {v(vCsV,2)}, {v(sm,2)}, {v(av+2*h,2)} op_sel_hi:[0,0,1]')
        else: a(f'v_pk_fma_f32 {v(av+2*h,2)}, {v(vCsV,2)}, {v(vm_+2*h,2)}, {v(av+2*h,2)} op_sel_hi:[0,1,1]')
    for h in range(2):
        a(f'v_pk_mul_f32 {v(ak+2*h,2)}, {v(ak+2*h,2)}, {v(sm,2)} op_sel:[0,1] op_sel_hi:[1,1]')
        if bc: a(f'v_pk_mul_f32 {v(av+2*h,2)}, {v(av+2*h,2)}, {v(sm,2)} op_sel:[0,1] op_sel_hi:[1,1]')
        else: a(f'v_pk_mul_f32 {v(av+2*h,2)}, {v(av+2*h,2)}, {v(vc_+2*h,2)}')
        a(f'v_cvt_pk_bf16_f32 {v(qf+h)}, {v(aq+2*h)}, {v(aq+2*h+1)}')
    a(f'v_mul_f32 {v(cq)}, 0x3eb8aa3b, {v(sm+1)}')
    for h in range(2):
        a(f'v_cvt_pk_bf16_f32 {v(kf+h)}, {v(ak+2*h)}, {v(ak+2*h+1)}')
        a(f'v_cvt_pk_bf16_f32 {v(vf+h)}, {v(av+2*h)}, {v(av+2*h+1)}')
for tt in range(5):
    a.wait(lg=f'e{tt}')
    ln_tile(acc(tt,0), acc(tt,1), acc(tt,2), vSm+2*tt, vVm+4*tt, vVc+4*tt, vQf+2*tt, vKf+2*tt, vVf+2+2*tt, cqr(tt), False)
a(f's_cmp_eq_u32 {sP}, 0\ns_cbranch_scc0 L_fix')
a.label('L_attn')
stamp('epi', True)
vS = vAcc; vSp = vAcc + 20; vO = vAcc; vD = vAcc + 20; vMx = vAcc + 40; vMy = vAcc + 46
vPb = vFr + 10
vPk = vFr + 30
vPK = vFr + 40
for tt in range(5):
    a(f'v_mfma_f32_16x16x16_bf16 {v(vS+4*tt,4)}, {v(vKf+2*tt,2)}, {v(vQf+2*tt,2)}, {v(vBc,4)}')
    if tt > 0:
        a(f'v_mfma_f32_16x16x16_bf16 {v(vSp+4*tt,4)}, {v(vKf+2*tt-2,2)}, {v(vQf+2*tt,2)}, {v(vBp1 if tt == 1 else vBp,4)}')
for tt in range(5):
    s = vS + 4*tt
    if tt > 0:
        for r in range(4): a(f'v_max_f32 {v(s+r)}, {v(s+r)}, {v(vSp+4*tt+r)}')
    a(f'v_max3_f32 {v(vMx+tt)}, {v(s)}, {v(s+1)}, {v(s+2)}\nv_max_f32 {v(vMx+tt)}, {v(vMx+tt)}, {v(s+3)}')
    a(f'v_mov_b32 {v(vMy+tt)}, {v(vMx+tt)}')
for tt in range(5): a(f'v_permlane32_swap_b32 {v(vMx+tt)}, {v(vMy+tt)}')
for tt in range(5): a(f'v_max_f32 {v(vMx+tt)}, {v(vMx+tt)}, {v(vMy+tt)}\nv_mov_b32 {v(vMy+tt)}, {v(vMx+tt)}')
for tt in range(5): a(f'v_permlane16_swap_b32 {v(vMx+tt)}, {v(vMy+tt)}')
for tt in range(5):
    s = vS + 4*tt
    a(f'v_max_f32 {v(vMx+tt)}, {v(vMx+tt)}, {v(vMy+tt)}\nv_mul_f32 {v(vMx+tt)}, {v(vMx+tt)}, {v(cqr(tt))}')
    for r in range(4): a(f'v_fma_f32 {v(s+r)}, {v(s+r)}, {v(cqr(tt))}, -{v(vMx+tt)}')
    for r in range(4): a(f'v_exp_f32 {v(s+r)}, {v(s+r)}')
for tt in range(5):
    s = vS + 4*tt
    for h in range(2): a(f'v_cvt_pk_bf16_f32 {v(vPk+2*tt+h)}, {v(s+2*h)}, {v(s+2*h+1)}')
    for h in range(2):
        a(f'v_bfi_b32 {v(vPb+4*tt+h)}, {v(vMc+h)}, 0, {v(vPk+2*tt+h)}')
        a(f'v_and_b32 {v(vPb+4*tt+2+h)}, {v(vMc+h)}, {v(vPk+2*tt+h)}')
for tt in range(5):
    a(f'v_mfma_f32_16x16x16_bf16 {v(vD+4*tt,4)}, {v(vOnes,2)}, {v(vPk+2*tt,2)}, 0')
    a(f'v_mfma_f32_16x16x32_bf16 {v(vO+4*tt,4)}, {v(vVf+2*tt,4)}, {v(vPb+4*tt,4)}, 0')
for tt in range(5): a(f'v_rcp_f32 {v(vD+4*tt)}, {v(vD+4*tt)}')
for tt in range(5):
    o = vO + 4*tt; pk = vPK + 2*TILE_ORD.index(tt)
    for h in range(2): a(f'v_pk_mul_f32 {v(o+2*h,2)}, {v(o+2*h,2)}, {v(vD+4*tt,2)} op_sel_hi:[1,0]')
    for h in range(2): a(f'v_cvt_pk_bf16_f32 {v(pk+h)}, {v(o+2*h)}, {v(o+2*h+1)}')

def publish(pk, gbase, lds):
    for pr in range(3):
        a(f'v_permlane16_swap_b32 {v(pk+4*pr)}, {v(pk+4*pr+2)}\nv_permlane16_swap_b32 {v(pk+4*pr+1)}, {v(pk+4*pr+3)}')
    for pr, tile in enumerate((1, 3, 0)):
        if pr == 2: a('s_mov_b32 exec_lo, 0xffff\ns_mov_b32 exec_hi, 0xffff')
        if lds: a(f'ds_write_b128 {v(vPubL)}, {v(pk+4*pr,4)} offset:{tile*2048}', 'own')
        if gbase is not None:
            a(f's_mov_b32 s0, {gbase + tile*16384}')
            a(f'buffer_store_dwordx4 {v(pk+4*pr,4)}, {v(vPubG)}, {rWS}, s0 offen sc1', 'pub')
    a('s_mov_b64 exec, -1')
def flag_set(slot_s):
    a(f'''s_lshl_b32 s0, {sM}, 2
s_add_u32 s0, s0, {sW}
s_lshl_b64 exec, 1, s0
v_mov_b32 {v(vT)}, 1''')
    a(f'buffer_store_dword {v(vT)}, {v(vFlag)}, {rWS}, {slot_s} offen sc1', 'flag')
    a('s_mov_b64 exec, -1')
def flag_wait(slot_s):
    l = poll_begin()
    a(f'buffer_load_dword {v(vT)}, {v(vFlag)}, {rWS}, {slot_s} offen sc1', 'poll')
    a.wait(vm='all')
    a(f'v_cmp_eq_u32 vcc, -1, {v(vT)}')
    poll_end(l)
def tile_dma(gbase):
    a(f's_lshl_b32 s1, {sW}, 12')
    for tt in range(5):
        a(f's_add_u32 m0, s1, {tt*16384}\ns_mov_b32 s0, {gbase - 4096 + tt*16384}')
        for j in range(4):
            a(f'buffer_load_dwordx4 {v(vDmaA if j < 2 else vDmaB)}, {rWS}, s0 offen offset:{j*1024} sc1 lds', f'T{tt}')
def tread(tt, ks, dst):
    return f'ds_read_b128 {v(dst,4)}, {v(vL16b if tt == 4 else vL16)} offset:{(tt & 3)*16384 + ks*1024}'

stamp('attn', True)
publish(vPK, TA, False)
lp1 = a.newl('p1')
a(f's_cmp_eq_u32 {sP}, 0\ns_cbranch_scc0 {lp1}')
a.track = False
a('s_waitcnt vmcnt(0)\ns_barrier')
for ks in range(16):
    for hh in range(2):
        a(f'ds_read_b64_tr_b16 {ag(wofrag(ks)+2*hh,2)}, {v(vTrO)} offset:{ks*4096 + hh*512}')
l = poll_begin()
a(f'''v_lshlrev_b32 {v(vT+1)}, 2, {v(vLane)}
global_load_dword {v(vT)}, {v(vT+1)}, {pDBG} sc1
s_waitcnt vmcnt(0)
v_cmp_eq_u32 vcc, 0, {v(vT)}
s_and_b32 vcc_lo, vcc_lo, 0x55555555
s_and_b32 vcc_hi, vcc_hi, 0x55555555
s_cmp_lg_u64 vcc, 0
s_cselect_b64 vcc, -1, 0''')
poll_end(l)
lw = a.newl('nw')
a(f's_cmp_lt_i32 {sJ}, 0\ns_cbranch_scc1 {lw}')
a(f'''v_lshlrev_b32 {v(vT+1)}, 1, {v(vG)}
v_xor_b32 {v(vT+1)}, {v(vQ)}, {v(vT+1)}
v_lshlrev_b32 {v(vT+1)}, 4, {v(vT+1)}
v_lshl_add_u32 {v(vT+1)}, {v(vG)}, 10, {v(vT+1)}
v_xor_b32 {v(vT+2)}, 128, {v(vT+1)}
s_lshl_b32 s0, {sJ}, 15
s_lshl_b32 s1, {sW}, 8
s_add_u32 s0, s0, s1
s_lshl_b32 s1, {sW}, 13''')
for i in range(8):
    a(f's_add_u32 m0, s1, {WDL + i*1024}')
    a(f'buffer_load_dwordx4 {v(vT+2 if (i >> 1) & 1 else vT+1)}, {rWD}, s0 offen lds')
    if i < 7: a('s_add_u32 s0, s0, 4096')
ffn_gu_issue(rWG, WGL)
a(f'''v_lshrrev_b32 {v(vT+1)}, 2, {v(vQ)}
v_and_b32 {v(vT+2)}, 1, {v(vG)}
v_lshl_or_b32 {v(vT+2)}, {v(vT+2)}, 2, {v(vT+1)}
v_lshlrev_b32 {v(vT+2)}, 5, {v(vT+2)}
v_and_b32 {v(vT+3)}, 3, {v(vLane)}
v_lshlrev_b32 {v(vT+3)}, 4, {v(vT+3)}
v_xor_b32 {v(vT+2)}, {v(vT+2)}, {v(vT+3)}
v_lshl_add_u32 {v(vT+1)}, {v(vG)}, 3, {v(vT+1)}
v_lshlrev_b32 {v(vT+1)}, 8, {v(vT+1)}
s_add_u32 s1, s1, {WDL}
v_add_u32 {v(vT+1)}, s1, {v(vT+1)}
s_waitcnt vmcnt(8) lgkmcnt(0)''')
for i in range(4):
    a(f'v_xor_b32 {v(vT+3)}, {64*i}, {v(vT+2)}\nv_add_u32 {v(vT+3)}, {v(vT+1)}, {v(vT+3)}')
    for tb in range(2):
        for hh in range(2):
            a(f'ds_read_b64_tr_b16 {v(vWd + (2*i+tb)*4 + 2*hh, 2)}, {v(vT+3)} offset:{hh*1024 + tb*8}')
a('s_waitcnt lgkmcnt(0)')
ffn_gu_issue(rWU, WUL)
a.label(lw)
a('s_waitcnt lgkmcnt(0)')
a.track = True
a.label(lp1)
a.wait(vm='all')
a(f's_lshl_b32 {sT[0]}, {sP}, 9')
stamp('oack', True)
flag_set(sT[0])
a('s_barrier')
flag_wait(sT[0])
stamp('oflag', True)
tile_dma(TA)
for tt in range(6):
    fill = []
    if tt < 5:
        a.wait(vm=f'T{tt}')
        a('s_barrier')
    for ks in range(16):
        if tt > 0:
            a.wait(lg=f'o{tt-1}_{ks}')
            d = v(vRes + 4*(tt-1), 4)
            a(f'v_mfma_f32_16x16x32_bf16 {d}, {ag(wofrag(ks),4)}, {v(vFr+4*ks,4)}, {d}')
        if tt < 5: a(tread(tt, ks, vFr + 4*ks), f'o{tt}_{ks}')
for tt in range(5):
    pk = vPK + 2*TILE_ORD.index(tt)
    for h in range(2): a(f'v_cvt_pk_bf16_f32 {v(pk+h)}, {v(vRes+4*tt+2*h)}, {v(vRes+4*tt+2*h+1)}')
stamp('wo', True)
publish(vPK, TB, True)
a.wait(lg='all')
a('s_barrier')
fa, fz, dl, dg, zl, zg = vFr, vFr + 8, vFr + 16, vFr + 20, vFr + 24, vFr + 28
a(f'v_add_u32 {v(vT)}, {OWN}, {v(vL16)}')
for s in range(2): a(f'ds_read_b128 {v(fa+4*s,4)}, {v(vOwnR)} offset:{s*1024}', 'fa')
for s in range(2): a(f'ds_read_b128 {v(fz+4*s,4)}, {v(vT)} offset:{s*1024}', 'fz')
for (f_, l_, g_, tag) in ((fa, dl, dg, 'fa'), (fz, zl, zg, 'fz')):
    a.wait(lg=tag)
    for s in range(2):
        a(f'v_mfma_f32_16x16x32_bf16 {v(g_,4)}, {v(f_+4*s,4)}, {v(f_+4*s,4)}, {0 if s == 0 else v(g_,4)}')
    for s in range(2):
        a(f'v_mfma_f32_16x16x32_bf16 {v(l_,4)}, {v(vLf+4*s,4)}, {v(f_+4*s,4)}, {0 if s == 0 else v(l_,4)}')
diag_select(dl + 2, dg)
a(f'v_mov_b32 {v(dl+3)}, 0\ns_mul_i32 {sT[1]}, {sP}, {ST_L}\ns_mov_b64 exec, {mDIAG}')
a(f'buffer_store_dwordx4 {v(dl,4)}, {v(vStP)}, {rWS}, {sT[1]} offen sc1', 'stp')
a('s_mov_b64 exec, -1')
lz = a.newl('nz')
a(f's_or_b32 s0, {sP}, {sW}\ns_cbranch_scc1 {lz}')
a.track = False
diag_select(zl + 2, zg)
a(f'v_mov_b32 {v(zl+3)}, 0\nv_subrev_u32 {v(vT)}, 256, {v(vStP)}\ns_mov_b64 exec, {mDIAG}')
a(f'buffer_store_dwordx4 {v(zl,4)}, {v(vT)}, {rWS}, 0 offen sc1')
a('s_mov_b64 exec, -1')
a.track = True
a.label(lz)
stamp('stp', True)
gg = vFr + 32
l = poll_begin()
for i in range(4): a(f'buffer_load_dwordx4 {v(gg+4*i,4)}, {v(vStG)}, {rWS}, {sT[1]} offen offset:{i*1280} sc1', 'poll')
a.wait(vm='all')
a(f'''v_or3_b32 {v(vT)}, {v(gg+3)}, {v(gg+7)}, {v(gg+11)}
v_or_b32 {v(vT)}, {v(vT)}, {v(gg+15)}
v_cmp_ne_u32 vcc, 0, {v(vT)}''')
poll_end(l)
stamp('stg', True)
lb = a.newl('nb')
a(f's_cmp_eq_u32 {sP}, 0\ns_cbranch_scc0 {lb}')
a.track = False
a(f's_mov_b32 {sT[0]}, 256')
flag_set(sT[0])
a.track = True
a.label(lb)
a(f'''v_pk_add_f32 {v(gg,2)}, {v(gg,2)}, {v(gg+4,2)}
v_pk_add_f32 {v(gg+8,2)}, {v(gg+8,2)}, {v(gg+12,2)}
v_add_f32 {v(gg+2)}, {v(gg+2)}, {v(gg+6)}
v_add_f32 {v(gg+10)}, {v(gg+10)}, {v(gg+14)}
v_pk_add_f32 {v(gg,2)}, {v(gg,2)}, {v(gg+8,2)}
v_add_f32 {v(gg+2)}, {v(gg+2)}, {v(gg+10)}''')
for i in range(3): a(f'v_mov_b32 {v(gg+4+i)}, {v(gg+i)}')
for i in range(3): a(f'v_permlane16_swap_b32 {v(gg+i)}, {v(gg+4+i)}')
for i in range(3): a(f'v_add_f32 {v(gg+i)}, {v(gg+i)}, {v(gg+4+i)}')
q4, x4, var = vFr, vFr + 4, vFr + 8
ln_basic(gg, gg + 2, q4, var, x4 + 2)
a(f'''v_fma_f32 {v(x4)}, {v(q4)}, {sSW}, {v(gg+1)}
v_add_f32 {v(q4+2)}, 1.0, {v(x4+2)}
v_mul_f32 {v(x4)}, {v(x4)}, {v(x4+2)}
v_mul_f32 {v(q4+3)}, {v(q4)}, {v(x4+2)}
v_mul_f32 {v(vT)}, {v(q4+2)}, {v(q4+2)}
v_max_f32_dpp {v(vT+1)}, {v(x4)}, {v(x4)} row_ror:8 row_mask:0xf bank_mask:0xf
v_fmaak_f32 {v(vT)}, {v(vT)}, {v(var)}, 0x3727c5ac
v_rsq_f32 {v(vT)}, {v(vT)}
v_max_f32_dpp {v(vT+1)}, {v(vT+1)}, {v(vT+1)} row_ror:4 row_mask:0xf bank_mask:0xf
v_mov_b32 {v(x4+3)}, {v(q4+3)}
v_mul_f32 {v(q4+1)}, {v(q4+2)}, {v(vT)}
v_max_f32_dpp {v(vT+1)}, {v(vT+1)}, {v(vT+1)} row_ror:2 row_mask:0xf bank_mask:0xf
s_lshl_b32 s0, {sW}, 4
v_add_u32 {v(x4+1)}, s0, {v(vQ)}
v_max_f32_dpp {v(vT+1)}, {v(vT+1)}, {v(vT+1)} row_ror:1 row_mask:0xf bank_mask:0xf''')
a(f'ds_write_b128 {v(vStW)}, {v(q4,4)}', 'sw')
a(f'ds_write2_b32 {v(vStV)}, {v(q4)}, {v(q4+1)} offset0:0 offset1:80', 'sw')
a(f'''v_cmp_eq_f32 vcc, {v(x4)}, {v(vT+1)}
s_add_u32 s0, s0, {AMX}
v_mov_b32 {v(vT)}, s0
s_ff1_i32_b32 s1, vcc_lo
s_and_b32 s1, s1, 15
s_lshl_b64 exec, 1, s1''')
a(f'ds_write_b128 {v(vT)}, {v(x4,4)}', 'sw')
a(f'''s_mov_b64 exec, -1
v_and_b32 {v(vT)}, 3, {v(vLane)}
v_lshlrev_b32 {v(vT)}, 4, {v(vT)}
v_add_u32 {v(vT)}, {AMX}, {v(vT)}''')
a.wait(lg='all')
a('s_barrier')
a(f'ds_read_b128 {v(x4,4)}, {v(vT)}', 'am')
vAb = vFr + 12
for tt in range(1, 5): a(f'ds_read_b64 {v(vAb+2*tt,2)}, {v(vSQ)} offset:{tt*256 + 8}', 'ab')
a.wait(lg='am')
a(f'''v_max_f32_dpp {v(vT+1)}, {v(x4)}, {v(x4)} quad_perm:[1,0,3,2] row_mask:0xf bank_mask:0xf
v_max_f32_dpp {v(vT+1)}, {v(vT+1)}, {v(vT+1)} quad_perm:[2,3,0,1] row_mask:0xf bank_mask:0xf
v_cmp_eq_f32 vcc, {v(x4)}, {v(vT+1)}
s_ff1_i32_b32 s1, vcc_lo
s_and_b32 s1, s1, 3
v_readlane_b32 {sBL}, {v(x4+1)}, s1
v_readlane_b32 {sBR}, {v(x4)}, s1
v_readlane_b32 {sBS}, {v(x4+2)}, s1
v_readlane_b32 {sBN}, {v(x4+3)}, s1''')
lcn, lcr = a.newl('cn'), a.newl('cr')
a.track = False
a(f'''s_cmp_eq_u32 {sW}, 0
s_cbranch_scc0 {lcr}
s_lshr_b32 s0, {sBL}, 4
s_lshl_b32 s0, s0, 11
s_and_b32 s1, {sBL}, 15
s_lshl_b32 s1, s1, 4
s_add_u32 s0, s0, s1
s_add_u32 s0, s0, {OWN + 2048}
v_lshrrev_b32 {v(vT)}, 2, {v(vLane)}
v_and_b32 {v(vT)}, 7, {v(vT)}
v_lshlrev_b32 {v(vT)}, 8, {v(vT)}
v_and_b32 {v(vT+1)}, 3, {v(vLane)}
v_lshl_add_u32 {v(vT)}, {v(vT+1)}, 2, {v(vT)}
v_add_u32 {v(vT)}, s0, {v(vT)}
ds_read_b32 {v(vT+1)}, {v(vT)}
s_mul_i32 s0, {sP}, {CA_L}
s_lshl_b32 s1, {sG}, 10
s_add_u32 s0, s0, s1
s_lshl_b32 s1, {sM}, 7
s_add_u32 s0, s0, s1
s_add_u32 s0, s0, {CA}
v_lshlrev_b32 {v(vT)}, 2, {v(vLane)}
v_mov_b32 {v(vT+3)}, {sBN}
s_waitcnt lgkmcnt(0)
v_lshlrev_b32 {v(vT+2)}, 16, {v(vT+1)}
v_and_b32 {v(vT+1)}, 0xffff0000, {v(vT+1)}
v_fma_f32 {v(vT+2)}, {v(vT+2)}, {sBS}, {v(vT+3)}
v_fma_f32 {v(vT+1)}, {v(vT+1)}, {sBS}, {v(vT+3)}
v_cvt_pk_bf16_f32 {v(vT+1)}, {v(vT+2)}, {v(vT+1)}
s_mov_b32 exec_hi, 0
buffer_store_dword {v(vT+1)}, {v(vT)}, {rWS}, s0 offen sc1
s_mov_b64 exec, -1
s_branch {lcn}''')
a.label(lcr)
a(f'''s_lshl_b32 s0, {sM}, 2
s_add_u32 s0, s0, {sW}
s_cmp_eq_u32 s0, 1
s_cbranch_scc0 {lcn}
s_lshl_b32 s0, {sG}, 6
s_add_u32 s0, s0, {sBL}
v_mov_b32 {v(vT+2)}, {sBR}
v_mov_b32 {v(vT+3)}, s0
v_mov_b32 {v(vT)}, 0
s_mul_i32 s0, {sP}, {RG_L}
s_lshl_b32 s1, {sG}, 8
s_add_u32 s0, s0, s1
s_add_u32 s0, s0, {RG}
s_mov_b64 exec, 1
buffer_store_dwordx2 {v(vT+2,2)}, {v(vT)}, {rWS}, s0 offen sc1
s_mov_b64 exec, -1''')
a.label(lcn)
a.track = True
a.wait(lg='all')
for tt in range(1, 5):
    for h in range(2):
        b = vRes + 4*tt + 2*h
        a(f'v_pk_fma_f32 {v(b,2)}, {v(b,2)}, {v(vAb+2*tt,2)}, {v(vAb+2*tt,2)} op_sel:[0,0,1] op_sel_hi:[1,0,1]')
def out_store():
    for tt in range(1, 5):
        for h in range(2): a(f'v_cvt_pk_bf16_f32 {v(vPK+2*(tt-1)+h)}, {v(vRes+4*tt+2*h)}, {v(vRes+4*tt+2*h+1)}')
    a(f'''v_and_b32 {v(vT)}, 31, {v(vLane)}
v_lshlrev_b32 {v(vT)}, 11, {v(vT)}
v_lshrrev_b32 {v(vT+1)}, 5, {v(vLane)}
v_lshl_add_u32 {v(vT)}, {v(vT+1)}, 4, {v(vT)}
s_and_b32 s0, {sG}, 15
s_lshl_b32 s0, s0, 17
s_lshr_b32 s1, {sG}, 4
s_lshl_b32 s1, s1, 10
s_add_u32 s0, s0, s1
s_lshl_b32 s1, {sM}, 7
s_add_u32 s0, s0, s1
s_lshl_b32 s1, {sW}, 5
s_add_u32 s0, s0, s1
s_add_u32 s1, s0, 65536''')
    for pr in range(2):
        a(f'v_permlane16_swap_b32 {v(vPK+4*pr)}, {v(vPK+4*pr+2)}\nv_permlane16_swap_b32 {v(vPK+4*pr+1)}, {v(vPK+4*pr+3)}')
    a(f'buffer_store_dwordx4 {v(vPK,4)}, {v(vT)}, {rOUT}, s0 offen')
    a(f'buffer_store_dwordx4 {v(vPK+4,4)}, {v(vT)}, {rOUT}, s1 offen')
lo = a.newl('no')
a(f's_cmp_eq_u32 {sP}, 0\ns_cbranch_scc1 {lo}')
a.track = False
out_store()
a.track = True
a.label(lo)

def rg_wait():
    a(f'''v_and_b32 {v(vT)}, 31, {v(vLane)}
v_lshlrev_b32 {v(vT)}, 8, {v(vT)}
s_mul_i32 s0, {sP}, {RG_L}
s_add_u32 s0, s0, {RG}''')
    l = poll_begin()
    a(f'buffer_load_dwordx2 {v(vT+2,2)}, {v(vT)}, {rWS}, s0 offen sc1')
    a(f's_waitcnt vmcnt(0)\nv_cmp_eq_u32 vcc, -1, {v(vT+3)}')
    poll_end(l)
    a(f'v_max_f32_dpp {v(vT+1)}, {v(vT+2)}, {v(vT+2)} row_ror:8 row_mask:0xf bank_mask:0xf')
    for sh in (4, 2, 1): a(f'v_max_f32_dpp {v(vT+1)}, {v(vT+1)}, {v(vT+1)} row_ror:{sh} row_mask:0xf bank_mask:0xf')
    a(f'''v_mov_b32 {v(vT)}, {v(vT+1)}
v_permlane16_swap_b32 {v(vT)}, {v(vT+1)}
v_max_f32 {v(vT+1)}, {v(vT)}, {v(vT+1)}
v_cmp_eq_f32 vcc, {v(vT+2)}, {v(vT+1)}
s_ff1_i32_b32 s1, vcc_lo
s_and_b32 s1, s1, 31
v_readlane_b32 {sWI}, {v(vT+3)}, s1
v_readlane_b32 {sWR}, {v(vT+2)}, s1''')
a.track = False
stamp('cand', True)
rg_wait()
stamp('rg', True)
lnf = a.newl('nf')
a(f's_cmp_lt_i32 {sJ}, 0\ns_cbranch_scc1 {lnf}')
xf = vAcc + 12
fg = vAcc + 28
a(f'''s_lshr_b32 s0, {sWI}, 6
s_lshl_b32 s0, s0, 10
s_mul_i32 s1, {sP}, {CA_L}
s_add_u32 s0, s0, s1
s_lshl_b32 s1, {sW}, 8
s_add_u32 s0, s0, s1
s_add_u32 s0, s0, {CA}
v_lshlrev_b32 {v(vT)}, 4, {v(vG)}''')
a(f'''v_lshrrev_b32 {v(vT+1)}, 2, {v(vQ)}
v_lshl_add_u32 {v(vT+1)}, {v(vG)}, 3, {v(vT+1)}
v_lshlrev_b32 {v(vT+1)}, 6, {v(vT+1)}
v_and_b32 {v(vT+2)}, 3, {v(vLane)}
v_lshl_add_u32 {v(vT+1)}, {v(vT+2)}, 3, {v(vT+1)}
v_and_b32 {v(vT+2)}, 1, {v(vG)}
v_lshl_add_u32 {v(vT+1)}, {v(vT+2)}, 5, {v(vT+1)}
s_lshl_b32 s1, {sW}, 13
s_add_u32 s1, s1, {RING}
v_add_u32 {v(vT+1)}, s1, {v(vT+1)}
v_xor_b32 {v(vT+2)}, 32, {v(vT+1)}''')
l = poll_begin()
for s in range(4): a(f'buffer_load_dwordx4 {v(xf+4*s,4)}, {v(vT)}, {rWS}, s0 offen offset:{64*s} sc1')
a('s_waitcnt vmcnt(0)')
a(f'v_max3_u32 {v(vT+3)}, {v(xf)}, {v(xf+1)}, {v(xf+2)}')
for i in range(3, 15, 2): a(f'v_max3_u32 {v(vT+3)}, {v(vT+3)}, {v(xf+i)}, {v(xf+i+1)}')
a(f'v_max_u32 {v(vT+3)}, {v(vT+3)}, {v(xf+15)}\nv_cmp_eq_u32 vcc, -1, {v(vT+3)}')
poll_end(l)
for s in range(4):
    for u in range(2):
        for ft in range(2):
            for hh in range(2):
                a(f'ds_read_b64_tr_b16 {v(vFr + (s*4+u*2+ft)*4 + 2*hh, 2)}, {v(vT+2 if ft else vT+1)} offset:{(WUL if u else WGL) - RING + s*2048 + hh*256}')
    if s & 1: a('s_waitcnt lgkmcnt(0)')
for s in range(4):
    for k in range(4):
        d = v(fg + 4*k, 4)
        a(f'v_mfma_f32_16x16x32_bf16 {d}, {v(vFr+(s*4+k)*4,4)}, {v(xf+4*s,4)}, {0 if s == 0 else d}')
a(f'''s_lshl_b32 s1, {sW}, 8
s_add_u32 s1, s1, {RED}
v_add_u32 {v(vT+1)}, s1, {v(vT)}
s_mov_b32 exec_lo, 0x10001
s_mov_b32 exec_hi, 0x10001''')
for k in range(4): a(f'ds_write_b128 {v(vT+1)}, {v(fg+4*k,4)} offset:{64*k}')
a(f'''s_mov_b64 exec, -1
v_lshlrev_b32 {v(vT+1)}, 2, {v(vLane)}
v_add_u32 {v(vT+1)}, {RED}, {v(vT+1)}
s_waitcnt lgkmcnt(0)
s_barrier
ds_read2st64_b32 {v(xf,2)}, {v(vT+1)} offset0:0 offset1:1
ds_read2st64_b32 {v(xf+2,2)}, {v(vT+1)} offset0:2 offset1:3
s_lshl_b32 s1, {sW}, 6
s_add_u32 s1, s1, {HB}
v_lshl_add_u32 {v(vT+2)}, {v(vLane)}, 1, s1
v_add_u32 {v(vT+3)}, s1, {v(vT)}
s_waitcnt lgkmcnt(0)
v_add_f32 {v(xf)}, {v(xf)}, {v(xf+1)}
v_add_f32 {v(xf+2)}, {v(xf+2)}, {v(xf+3)}
v_add_f32 {v(xf)}, {v(xf)}, {v(xf+2)}
v_mov_b32 {v(xf+1)}, {v(xf)}
v_permlane32_swap_b32 {v(xf)}, {v(xf+1)}
v_mul_f32 {v(xf+2)}, 0xbfb8aa3b, {v(xf)}
v_exp_f32 {v(xf+2)}, {v(xf+2)}
v_mul_f32 {v(xf)}, {v(xf)}, {v(xf+1)}
v_add_f32 {v(xf+2)}, 1.0, {v(xf+2)}
v_rcp_f32 {v(xf+2)}, {v(xf+2)}
v_mul_f32 {v(xf)}, {v(xf)}, {v(xf+2)}
v_cvt_pk_bf16_f32 {v(xf)}, {v(xf)}, {v(xf)}
s_mov_b32 exec_hi, 0
ds_write_b16 {v(vT+2)}, {v(xf)}
s_mov_b64 exec, -1
s_waitcnt lgkmcnt(0)
ds_read_b128 {v(xf+4,4)}, {v(vT+3)}
s_waitcnt lgkmcnt(0)''')
yd = vFr
for ct in range(8): a(f'v_mfma_f32_16x16x32_bf16 {v(yd+4*ct,4)}, {v(vWd+4*ct,4)}, {v(xf+4,4)}, 0')
a(f'''v_lshlrev_b32 {v(vT+1)}, 6, {v(vQ)}
v_add_u32 {v(vT+1)}, {v(vT+1)}, {v(vT)}
s_lshl_b32 s0, {sJ}, 10
s_mul_i32 s1, {sP}, {YP_L}
s_add_u32 s0, s0, s1
s_lshl_b32 s1, {sW}, 8
s_add_u32 s0, s0, s1
s_add_u32 s0, s0, {YP}''')
for i in range(4):
    a(f's_mov_b32 exec_lo, {0x10001 << i:#x}\ns_mov_b32 exec_hi, {0x10001 << i:#x}')
    for h in range(4): a(f'v_cvt_pk_bf16_f32 {v(xf+8+h)}, {v(yd+8*i+2*h)}, {v(yd+8*i+2*h+1)}')
a(f'''s_mov_b32 exec_lo, 0xf000f
s_mov_b32 exec_hi, 0xf000f
buffer_store_dwordx4 {v(xf+8,4)}, {v(vT+1)}, {rWS}, s0 offen sc1
s_mov_b64 exec, -1''')
a.label(lnf)
stamp('ffn', True)
a(f's_cmp_eq_u32 {sP}, 0\ns_cbranch_scc0 L_final')
a.track = True

a(f's_mov_b32 {sT[0]}, 256')
flag_wait(sT[0])
stamp('xflag')
tile_dma(TB)
NR = 8
seq = [(tt, ks) for tt in range(5) for ks in range(16)]
def p3_read(i):
    tt, ks = seq[i]
    if ks == 0:
        a.wait(vm=f'T{tt}'); a('s_barrier')
    a(tread(tt, ks, vFr + 4*(i % NR)), f'p{i}')
for i in range(NR - 1): p3_read(i)
for i, (tt, ks) in enumerate(seq):
    a.wait(lg=f'p{i}')
    for part in range(3):
        a(qkv_mfma(tt, part, ks, v(vFr + 4*(i % NR), 4), ks == 0))
        if part == 0 and i + NR - 1 < len(seq): p3_read(i + NR - 1)
stamp('gemm3')
a(f'''v_mov_b32 {v(vT)}, {v(vStG)}
v_mov_b32 {v(vT+1)}, {v(vStW)}
v_mov_b32 {v(vT+2)}, {v(vStV)}
v_permlane32_swap_b32 {v(vStG)}, {v(vT)}
v_permlane32_swap_b32 {v(vStW)}, {v(vT+1)}
v_permlane32_swap_b32 {v(vStV)}, {v(vT+2)}
s_mov_b32 {sP}, 1
s_branch L_epi''')

a.track = False
def y_gather(layer):
    yl = vAcc
    ya = vAcc + 44
    a(f'''v_lshlrev_b32 {v(vT)}, 4, {v(vQ)}
v_lshl_add_u32 {v(vT)}, {v(vG)}, 10, {v(vT)}
v_mov_b32 {v(vT+1)}, 0x3f80
v_mov_b32 {v(vT+2)}, 0x3f800000
v_mov_b32 {v(yl+40)}, 0
v_mov_b32 {v(yl+41)}, 0
v_mov_b32 {v(yl+42)}, 0
v_mov_b32 {v(yl+43)}, 0''')
    l = poll_begin()
    a(f's_lshl_b32 s0, {sW}, 8\ns_add_u32 s0, s0, {YP + layer*YP_L}')
    for i in range(11):
        if i == 10: a('s_mov_b32 exec_hi, 0xffff')
        a(f'buffer_load_dwordx4 {v(yl+4*i,4)}, {v(vT)}, {rWS}, s0 offen sc1')
        if i < 10: a('s_add_u32 s0, s0, 4096')
    a(f's_mov_b64 exec, -1\nv_mov_b32 {v(vT+3)}, 0')
    for i in range(11):
        a(f's_waitcnt vmcnt({10-i})')
        a(f'v_max3_u32 {v(vT+3)}, {v(vT+3)}, {v(yl+4*i)}, {v(yl+4*i+1)}\nv_max3_u32 {v(vT+3)}, {v(vT+3)}, {v(yl+4*i+2)}, {v(yl+4*i+3)}')
        for e in range(8):
            a(f'v_dot2_f32_bf16 {v(ya+e)}, {v(yl+4*i+e//2)}, {v(vT+1+(e&1))}, {0 if i == 0 else v(ya+e)}')
    a(f'v_cmp_eq_u32 vcc, -1, {v(vT+3)}')
    poll_end(l)
    a('s_nop 2')
    for e in range(4): a(f'v_permlane32_swap_b32 {v(ya+e)}, {v(ya+4+e)}')
    for e in range(4): a(f'v_add_f32 {v(ya+e)}, {v(ya+e)}, {v(ya+4+e)}')
    for e in range(2): a(f'v_permlane16_swap_b32 {v(ya+e)}, {v(ya+2+e)}')
    a(f'''v_mov_b32 {v(vT+1)}, {sWR}
v_mul_f32 {v(vT+1)}, 0xbfb8aa3b, {v(vT+1)}
v_exp_f32 {v(vT+1)}, {v(vT+1)}
v_add_f32 {v(ya)}, {v(ya)}, {v(ya+2)}
v_add_f32 {v(vT+1)}, 1.0, {v(vT+1)}
v_rcp_f32 {v(vT+1)}, {v(vT+1)}
v_add_f32 {v(ya+1)}, {v(ya+1)}, {v(ya+3)}
v_mul_f32 {v(ya)}, {v(ya)}, {v(vT+1)}
v_mul_f32 {v(ya+1)}, {v(ya+1)}, {v(vT+1)}''')
    a(f'''s_lshl_b32 s0, {sW}, 7
v_lshl_add_u32 {v(vT)}, {v(vQ)}, 3, s0
v_lshl_add_u32 {v(vT)}, {v(vG)}, 1, {v(vT)}''')
    return ya
def res_patch_addr():
    a(f'''s_lshl_b32 s0, {sM}, 8
s_lshl_b32 s1, {sW}, 6
s_add_u32 s0, s0, s1
s_add_u32 s0, s0, {YF}
v_lshl_add_u32 {v(vT+1)}, {v(vG)}, 4, s0''')

a.label('L_fix')
sTT, sQQ = sT[2], sT[3]
lown = a.newl('own')
a(f'''s_lshr_b32 s0, {sWI}, 6
s_and_b32 s1, {sWI}, 63
s_lshr_b32 {sTT}, s1, 4
s_add_u32 {sTT}, {sTT}, 1
s_and_b32 {sQQ}, s1, 15
s_cmp_eq_u32 s0, {sG}
s_cbranch_scc1 {lown}
s_add_u32 s0, s0, 1
s_cmp_eq_u32 s0, {sG}
s_cbranch_scc0 L_attn
s_and_b32 s0, {sG}, 15
s_cbranch_scc0 L_attn
s_cmp_ge_u32 s1, 57
s_cbranch_scc0 L_attn
s_mov_b32 {sTT}, 0''')
a.label(lown)
ya = y_gather(0)
a(f'''s_lshl_b32 s0, {sM}, 6
v_subrev_u32 {v(vT+1)}, s0, {v(vT)}
v_and_b32 {v(vT+1)}, 511, {v(vT+1)}
v_lshrrev_b32 {v(vT+2)}, 3, {v(vT+1)}
v_lshlrev_b32 {v(vT+2)}, 8, {v(vT+2)}
v_lshl_add_u32 {v(vT+2)}, {v(vG)}, 2, {v(vT+2)}
s_lshl_b32 s0, {sTT}, 14
s_lshl_b32 s1, {sQQ}, 4
s_add_u32 s0, s0, s1
v_add_u32 {v(vT+2)}, s0, {v(vT+2)}
ds_read_b32 {v(ya+2)}, {v(vT+2)}
s_lshl_b32 s0, {sTT}, 8
s_add_u32 s0, s0, s1
s_add_u32 s0, s0, {SQ + 8}
v_mov_b32 {v(vT+2)}, s0
ds_read_b64 {v(ya+4,2)}, {v(vT+2)}
v_lshlrev_b32 {v(vT)}, 2, {v(vT)}
v_add_u32 {v(vT)}, {YF}, {v(vT)}
v_lshlrev_b32 {v(vT+1)}, 1, {v(vT+1)}
v_add_u32 {v(vT+1)}, {ROW}, {v(vT+1)}
ds_write_b64 {v(vT)}, {v(ya,2)}
s_waitcnt lgkmcnt(1)
v_and_b32 {v(ya+3)}, 0xffff0000, {v(ya+2)}
v_lshlrev_b32 {v(ya+2)}, 16, {v(ya+2)}
v_fma_f32 {v(ya+2)}, {v(ya+2)}, {v(ya+4)}, {v(ya+5)}
v_fma_f32 {v(ya+3)}, {v(ya+3)}, {v(ya+4)}, {v(ya+5)}
v_add_f32 {v(ya+2)}, {v(ya+2)}, {v(ya)}
v_add_f32 {v(ya+3)}, {v(ya+3)}, {v(ya+1)}
v_cvt_pk_bf16_f32 {v(ya+4)}, {v(ya+2)}, {v(ya+3)}
ds_write_b32 {v(vT+1)}, {v(ya+4)}
v_lshlrev_b32 {v(ya+2)}, 16, {v(ya+4)}
v_and_b32 {v(ya+3)}, 0xffff0000, {v(ya+4)}
v_add_f32 {v(ya+6)}, {v(ya+2)}, {v(ya+3)}
v_mul_f32 {v(ya+7)}, {v(ya+2)}, {v(ya+2)}
v_fmac_f32 {v(ya+7)}, {v(ya+3)}, {v(ya+3)}''')
for sh in (8, 4, 2, 1):
    for e in (6, 7): a(f'v_add_f32_dpp {v(ya+e)}, {v(ya+e)}, {v(ya+e)} row_ror:{sh} row_mask:0xf bank_mask:0xf')
a(f'''s_lshl_b32 s0, {sW}, 5
s_add_u32 s0, s0, {RED}
v_lshl_add_u32 {v(vT+2)}, {v(vG)}, 3, s0
ds_write_b64 {v(vT+2)}, {v(ya+6,2)}
v_lshlrev_b32 {v(vT+2)}, 3, {v(vQ)}
v_add_u32 {v(vT+2)}, {RED}, {v(vT+2)}
v_lshlrev_b32 {v(vT+3)}, 4, {v(vG)}
v_add_u32 {v(vT+3)}, {ROW}, {v(vT+3)}''')
res_patch_addr()
a('s_waitcnt lgkmcnt(0)\ns_barrier')
fq, fk, fv, fs, fy = vAcc, vAcc + 4, vAcc + 8, vAcc + 12, vAcc + 16
rf = vAcc + 20
a(f'ds_read_b64 {v(fs,2)}, {v(vT+2)}\nds_read_b128 {v(fy,4)}, {v(vT+1)}')
for half in range(2):
    for i in range(8): a(f'ds_read_b128 {v(rf+4*i,4)}, {v(vT+3)} offset:{(half*8+i)*64}')
    for i in range(8):
        ks = half*8 + i
        a(f's_waitcnt lgkmcnt({7-i})')
        for part, d in enumerate((fq, fk, fv)):
            w = ag(wfrag(ks, part), 4); fr = v(rf+4*i, 4)
            A, B = (w, fr) if part < 2 else (fr, w)
            a(f'v_mfma_f32_16x16x32_bf16 {v(d,4)}, {A}, {B}, {0 if ks == 0 else v(d,4)}')
for sh in (8, 4, 2, 1):
    for e in (0, 1): a(f'v_add_f32_dpp {v(fs+e)}, {v(fs+e)}, {v(fs+e)} row_ror:{sh} row_mask:0xf bank_mask:0xf')
ln_basic(fs, fs + 1, fs + 2, vT, fs + 3)
nq, nk, nv, ncq = rf, rf + 2, rf + 4, rf + 6
ln_tile(fq, fk, fv, fs + 2, None, None, nq, nk, nv, ncq, True)
a(f'''v_cmp_eq_u32 {mT}, {sQQ}, {v(vQ)}
s_lshr_b32 s0, {sQQ}, 2
v_cmp_eq_u32 vcc, s0, {v(vG)}
s_mov_b32 s1, 0xffff
s_bitcmp1_b32 {sQQ}, 0
s_cselect_b32 s0, 0xffff0000, s1
s_bitcmp1_b32 {sQQ}, 1
s_cselect_b32 s1, s0, 0
s_cselect_b32 s0, 0, s0''')
for tt in range(5):
    ln_ = a.newl('pt')
    a(f's_cmp_eq_u32 {sTT}, {tt}\ns_cbranch_scc0 {ln_}\ns_mov_b64 exec, {mT}')
    for h in range(2): a(f'v_mov_b32 {v(vQf+2*tt+h)}, {v(nq+h)}\nv_mov_b32 {v(vKf+2*tt+h)}, {v(nk+h)}')
    a(f'v_mov_b32 {v(cqr(tt))}, {v(ncq)}')
    for r in range(4): a(f'v_add_f32 {v(vRes+4*tt+r)}, {v(vRes+4*tt+r)}, {v(fy+r)}')
    a(f'''s_mov_b64 exec, vcc
v_bfi_b32 {v(vVf+2+2*tt)}, s0, {v(nv)}, {v(vVf+2+2*tt)}
v_bfi_b32 {v(vVf+3+2*tt)}, s1, {v(nv)}, {v(vVf+3+2*tt)}
s_mov_b64 exec, -1''')
    a.label(ln_)
a('s_branch L_attn')

a.label('L_final')
a(f's_lshr_b32 s0, {sWI}, 6\ns_cmp_eq_u32 s0, {sG}\ns_cbranch_scc0 L_done')
ya = y_gather(1)
a(f'''v_lshlrev_b32 {v(vT)}, 2, {v(vT)}
v_add_u32 {v(vT)}, {YF}, {v(vT)}
ds_write_b64 {v(vT)}, {v(ya,2)}''')
res_patch_addr()
a(f'''s_waitcnt lgkmcnt(0)
s_barrier
ds_read_b128 {v(fy,4)}, {v(vT+1)}
s_and_b32 s1, {sWI}, 63
s_lshr_b32 {sTT}, s1, 4
s_and_b32 {sQQ}, s1, 15
v_cmp_eq_u32 {mT}, {sQQ}, {v(vQ)}
s_waitcnt lgkmcnt(0)''')
for tt in range(1, 5):
    a(f's_cmp_eq_u32 {sTT}, {tt-1}\ns_cselect_b64 exec, {mT}, 0')
    for r in range(4): a(f'v_add_f32 {v(vRes+4*tt+r)}, {v(vRes+4*tt+r)}, {v(fy+r)}')
a('s_mov_b64 exec, -1')
out_store()
a.label('L_done')
if PROBE:
    stamp('end')
    a('s_waitcnt lgkmcnt(0)\ns_add_u32 s98, s98, 6000')
    a.label('L_probe')
    a('s_sleep 4\ns_memrealtime s[96:97]\ns_waitcnt lgkmcnt(0)\ns_sub_u32 s97, s96, s98\ns_cmp_lt_i32 s97, 0\ns_cbranch_scc1 L_probe')
if DEBUG:
    stamp('end')
    n = nstamp[0]
    a(f's_waitcnt lgkmcnt(0)\ns_lshl_b32 s0, s2, 2\ns_add_u32 s0, s0, {sW}\ns_lshl_b32 s0, s0, 6\ns_add_u32 s0, s0, {DBGS}\nv_mov_b32 {v(vT)}, 0')
    a(f'v_mov_b32 {v(vT+1)}, s100\nbuffer_store_dword {v(vT+1)}, {v(vT)}, {rWS}, s0 offen')
    for i in range(1, n):
        a(f's_sub_u32 s1, s{STAMP0+2*i}, s{STAMP0}\nv_mov_b32 {v(vT+1)}, s1\nbuffer_store_dword {v(vT+1)}, {v(vT)}, {rWS}, s0 offen offset:{4*i}')
a.label('L_end')
a('s_endpgm')

body = a.finish()
ref = open(f'cdna_kernels/{NAME}.s.ref').read().split('\n')
hdr = [l for l in ref if l.startswith(';') and '@launch' not in l]
text = '\n'.join(hdr) + f'''
; @launch grid=(256,1,1) block=(256,1,1) lds=163840
.amdgcn_target "amdgcn-amd-amdhsa--gfx950"
.text
.globl {NAME}_kernel
.p2align 8
.type {NAME}_kernel,@function
{NAME}_kernel:
{body}
.section .rodata,"a"
.p2align 6
.amdhsa_kernel {NAME}_kernel
  .amdhsa_next_free_vgpr 512
  .amdhsa_next_free_sgpr 102
  .amdhsa_accum_offset 256
  .amdhsa_group_segment_fixed_size 0
  .amdhsa_kernarg_size 88
  .amdhsa_user_sgpr_count 2
  .amdhsa_user_sgpr_kernarg_segment_ptr 1
  .amdhsa_system_sgpr_workgroup_id_x 1
.end_amdhsa_kernel
'''
open(OUT, 'w').write(text)
print('wrote', OUT, 'instructions', len(a.ins), 'nops added', a.nops, 'temps', NT, 'stamps', stamp.names)
```

```python
import re

REG = re.compile(r'^(-|\|)?(?:abs\()?([vas])(?:(\d+)|\[(\d+):(\d+)\])\)?\|?$')
TRANS = ('v_exp_f32', 'v_log_f32', 'v_rcp_f32', 'v_rsq_f32', 'v_sqrt_f32', 'v_sin_f32', 'v_cos_f32')

def regs_of(tok):
    tok = tok.strip()
    if tok == 'vcc': return {('s', 'vcc')}
    if tok in ('vcc_lo', 'vcc_hi'): return {('s', 'vcc')}
    if tok in ('exec', 'exec_lo', 'exec_hi'): return {('s', 'exec')}
    if tok == 'm0': return {('s', 'm0')}
    m = REG.match(tok)
    if not m: return set()
    k = m.group(2)
    if m.group(3) is not None: return {(k, int(m.group(3)))}
    return {(k, i) for i in range(int(m.group(4)), int(m.group(5)) + 1)}

class Ins:
    def __init__(self, text):
        self.text = text
        t = text.split(';')[0].strip()
        self.label = t.endswith(':')
        self.op = t.split()[0] if t else ''
        self.w = set(); self.r = set(); self.rc = set(); self.rab = set(); self.data = set()
        if self.label or not t or self.op.startswith('.'):
            self.kind = 'none'; return
        rest = t[len(self.op):].strip()
        ops = []; depth = 0; cur = ''
        for ch in rest:
            if ch in '[(': depth += 1
            if ch in '])': depth -= 1
            if ch == ',' and depth == 0: ops.append(cur.strip()); cur = ''
            else: cur += ch
        if cur.strip(): ops.append(cur.strip())
        mods = ''
        if ops:
            parts = ops[-1].split(None, 1)
            ops[-1] = parts[0]; mods = parts[1] if len(parts) > 1 else ''
        self.ops = ops; self.mods = mods
        op = self.op
        R = [regs_of(o) for o in ops]
        U = lambda l: set().union(*l) if l else set()
        if op.startswith('v_mfma'):
            self.kind = 'mfma'; self.w = R[0]; self.rab = R[1] | R[2]; self.rc = R[3]; self.r = self.rab | self.rc
        elif op.startswith('v_permlane'):
            self.kind = 'valu'; self.w = R[0] | R[1]; self.r = R[0] | R[1]
        elif op.startswith('v_'):
            self.kind = 'valu'
            nd = 2 if ('_co_' in op or op.startswith('v_div_scale') or op.startswith('v_mad_u64')) else 1
            self.w = U(R[:nd]); self.r = U(R[nd:])
            if op.startswith(('v_fmac', 'v_dot2c', 'v_writelane')) or '_dpp' in op: self.r |= R[0]
        elif op.startswith('ds_'):
            self.kind = 'ds'
            if op.startswith(('ds_read', 'ds_bpermute', 'ds_permute', 'ds_swizzle')): self.w = R[0]; self.r = U(R[1:])
            else: self.r = U(R)
        elif op.startswith(('global_', 'buffer_')):
            self.kind = 'vmem'
            lds = ' lds' in (' ' + mods) or '_lds_' in op
            self.ldsdma = lds
            if lds: self.r = U(R) | {('s', 'm0')}
            elif '_load_' in op: self.w = R[0]; self.r = U(R[1:])
            else:
                self.r = U(R)
                if ops and ('x3' in op or 'x4' in op):
                    self.data = R[0] if op.startswith('buffer_') else R[1]
        elif op.startswith('s_'):
            self.kind = 'salu'
            if op.startswith(('s_cmp', 's_bitcmp', 's_waitcnt', 's_nop', 's_barrier', 's_branch', 's_cbranch', 's_sleep', 's_setprio', 's_endpgm')):
                self.r = U(R)
            else:
                self.w = R[0] if R else set(); self.r = U(R[1:])
                if 'saveexec' in op: self.w |= {('s', 'exec')}
        else:
            raise ValueError('unknown op ' + text)
    def states(self):
        if self.kind == 'none': return 0
        if self.op == 's_nop': return int(self.ops[0], 0) + 1
        return 1

def need(p, c):
    n = 0
    vw = {x for x in p.w if x[0] in 'va'}
    sw = {x for x in p.w if x[0] == 's'}
    if p.kind == 'valu':
        if c.kind == 'mfma' and vw & c.r: n = max(n, 2)
        if c.kind == 'valu':
            if c.op.startswith('v_permlane') and vw & c.r: n = max(n, 2)
            if '_dpp' in c.op and vw & c.r: n = max(n, 2)
            if c.op.startswith(('v_readlane', 'v_readfirstlane')) and vw & c.r: n = max(n, 1)
            if p.op.startswith(TRANS) and vw & c.r: n = max(n, 1)
            if sw & c.r: n = max(n, 4 if c.op.startswith(('v_readlane', 'v_writelane')) else 2)
        if c.kind == 'vmem' and sw & c.r: n = max(n, 5)
        if c.kind == 'salu' and sw & c.r: n = max(n, 1)
    if p.kind == 'mfma':
        if c.kind == 'mfma':
            if vw & c.rab: n = max(n, 8)
            if vw & c.rc and (c.rc != vw or c.op != p.op): n = max(n, 6)
            if vw & c.w and not (vw & c.rc): n = max(n, 6)
        elif c.kind in ('valu', 'ds', 'vmem'):
            if vw & (c.r | c.w): n = max(n, 8)
            if c.kind == 'valu' and p.rc & c.w: n = max(n, 3)
    if p.kind == 'salu' and ('s', 'm0') in p.w and c.kind == 'vmem' and getattr(c, 'ldsdma', False): n = max(n, 1)
    if p.kind == 'vmem' and p.data and p.data & c.w: n = max(n, 2)
    return n

def worst(p):
    if p.kind == 'mfma': return 8
    if p.kind == 'valu': return 5 if any(x[0] == 's' and x[1] != 'vcc' for x in p.w) else 2
    if p.kind == 'vmem' and p.data: return 2
    if p.kind == 'salu' and ('s', 'm0') in p.w: return 1
    return 0

class Asm:
    def __init__(self):
        self.ins = []; self.vmq = []; self.lgq = []; self.uid = 0; self.track = True
        self.bg = None; self.bgn = 0; self.bgsp = 16
    def __call__(self, text, tag=None):
        for line in text.split('\n'):
            line = line.strip()
            if not line: continue
            i = Ins(line); self.ins.append(i)
            if self.track:
                if i.kind == 'vmem': self.vmq.append(tag)
                elif i.kind == 'ds': self.lgq.append(tag)
            if self.bg and i.kind == 'valu':
                self.bgn += 1
                if self.bgn >= self.bgsp:
                    self.bgn = 0
                    q = self.bg; self.bg = None
                    pre, t, tg, post = q.pop(0)
                    for x in pre: self(x)
                    self(t, tg)
                    for x in post: self(x)
                    self.bg = q
    def label(self, name): self(name + ':')
    def newl(self, base): self.uid += 1; return f'L_{base}_{self.uid}'
    def _cnt(self, q, tag):
        tags = tag if isinstance(tag, (list, tuple, set)) else [tag]
        idx = [i for i, t in enumerate(q) if t in tags]
        if not idx: return None
        return len(q) - 1 - idx[-1]
    def wait(self, vm=None, lg=None):
        parts = []
        if vm is not None:
            n = 0 if vm == 'all' else self._cnt(self.vmq, vm)
            if n is not None:
                parts.append(f'vmcnt({min(n, 63)})'); self.vmq = self.vmq[len(self.vmq) - n:] if n else []
        if lg is not None:
            n = 0 if lg == 'all' else self._cnt(self.lgq, lg)
            if n is not None:
                parts.append(f'lgkmcnt({min(n, 15)})'); self.lgq = self.lgq[len(self.lgq) - n:] if n else []
        if parts: self('s_waitcnt ' + ' '.join(parts))
    def finish(self):
        out = []; nops = 0
        for c in self.ins:
            if c.kind != 'none':
                isbr = c.op.startswith(('s_branch', 's_cbranch', 's_setpc', 's_swappc'))
                dist = 0; pad = 0
                for p in reversed(out):
                    if dist >= 8: break
                    if p.kind == 'none': continue
                    n = need(p, c)
                    if isbr: n = max(n, worst(p) - 1)
                    pad = max(pad, n - dist)
                    dist += p.states()
                if pad > 0:
                    out.append(Ins(f's_nop {pad - 1}')); nops += 1
            out.append(c)
        self.nops = nops
        return '\n'.join(('' if i.label else '    ') + i.text for i in out)
```

```python
import sys
from asmlib import Asm

NAME = 'interleave_layers__sliding_local_dilated__moe_arch_mod__prompt'
def opt(name, default=None):
    for x in sys.argv[1:]:
        if x.startswith('--' + name + '='): return x.split('=', 1)[1]
    return default
DEBUG = opt('debug') is not None
DSEL = set((opt('debug') or '').split(','))
PROBE = opt('probe')
OUT = [x for x in sys.argv[1:] if not x.startswith('--')]
OUT = OUT[0] if OUT else f'cdna_kernels/{NAME}.s'
DEFER = int(opt('defer', 9))
HOOK1 = int(opt('hook1', 112)); HOOK2 = int(opt('hook2', 154))
LAG2 = int(opt('lag2', 8))

TA, TB = 0x10000, 0x290000
PR = 0x510000; PRS = 3072
PR_ST = (0, 1280 - 256); PR_CA = (2304, 2432); PR_ROW = 2560
GR = 0x5D0000; GRS = 2304
YP = 0x5F0000; YP_L = 48 * 1024
DBGS = 0x620000
WS_BYTES = 0x800000
IMG = 0; RING = 81920; OWN = 147456; MISC = 157696
SQ = MISC; VM = MISC + 1280; VC = MISC + 1600
ROW = MISC + 2048; RED = MISC + 3072; T0P = RED
WGL = RING; WUL = RING + 32768; WDL = IMG
NEG = 0xF149F2CA
SPIN = 200000
CODE_LANES = 8

a = Asm()
sW, sM, sG, sMode, sJ = 's3', 's4', 's5', 's6', 's7'
rX, rW, rWO, rWS, rWG, rWU, rWD, rOUT = ('s[8:11]', 's[12:15]', 's[16:19]', 's[20:23]', 's[24:27]', 's[28:31]', 's[32:35]', 's[36:39]')
pDBG, pWR = 's[40:41]', 's[42:43]'
mDIAG, mQ1, mQ2, mT0 = 's[44:45]', 's[46:47]', 's[48:49]', 's[50:51]'
sSW = 's52'; sXCC = 's53'; sP = 's54'
sWR, sWI = 's55', 's56'
sCNT = 's57'
sT = [f's{i}' for i in range(58, 70)]
mT = 's[70:71]'
sPr = 's100'; sGr = 's101'
STAMP0 = 72
_vn = [0]
def V(n=1, al=1):
    while _vn[0] % al: _vn[0] += 1
    b = _vn[0]; _vn[0] += n
    assert _vn[0] <= 256, 'out of VGPRs'
    return b
def v(i, n=1): return f'v{i}' if n == 1 else f'v[{i}:{i+n-1}]'
def ag(i, n=1): return f'a{i}' if n == 1 else f'a[{i}:{i+n-1}]'
vLane = V(); vQ = V(); vG = V()
vL16 = V(); vL16b = V(); vOwn = V()
vDma = V(4)
vPubG = V(); vPubL = V()
vSQ = V(); vVS = V()
vStP = V(); vFlag = V(); vGo = V(); vJunk = V()
vMc = V(2, 2)
vBc = V(4, 2); vBp = V(4, 2)
vCsQ = V(4, 2); vCsK = V(4, 2); vCsV = V(2, 2)
vLf = V(8, 2)
vOnes = V(4, 2)
vRes = V(20, 2)
vWd = V(32, 2)
vQf = V(10, 2); vKf = V(10, 2); vVf = V(12, 2)
vFr = V(52, 2)
vAcc = V(60, 2)
vT = V(256 - _vn[0], 2)
NT = 256 - vT
assert NT >= 8
def acc(tt, part): return vAcc + (tt * 3 + part) * 4
def wfrag(ks, part): return (ks * 3 + part) * 4
def wofrag(ks): return 192 + ks * 4
TILE_ORD = [1, 2, 3, 4, 0]
MF32 = 'v_mfma_f32_16x16x32_bf16'; MF16 = 'v_mfma_f32_16x16x16_bf16'
DPP = 'row_mask:0xf bank_mask:0xf'

nstamp = [0]
def stamp(nm):
    if DEBUG and (nm in DSEL or nm in ('start', 'end')):
        i = nstamp[0]; nstamp[0] += 1
        assert STAMP0 + 2 * i + 1 <= 97
        a(f's_memtime s[{STAMP0+2*i}:{STAMP0+2*i+1}]')
        stamp.names.append(nm)
    if PROBE == nm: a('s_memrealtime s[98:99]')
stamp.names = []

cold = []
def both_modes(emit):
    ls, lb = a.newl('slow'), a.newl('back')
    a(f's_cmp_lg_u32 {sMode}, 0\ns_cbranch_scc1 {ls}')
    emit('')
    a.label(lb)
    def blk():
        a.label(ls); emit('sc1'); a(f's_branch {lb}')
    cold.append(blk)

def run_item(it):
    pre, t, tg, post = it
    for x in pre: a(x)
    a(t, tg)
    for x in post: a(x)
class Sched:
    def __init__(self, space=4): self.fill = []; self.mem = []; self.last = 99; self.space = space; self.pre_done = False
    def gap(self, slots=2):
        self.last += 1
        if self.mem and self.pre_done and self.last >= self.space:
            pre, t, tg, post = self.mem.pop(0); a(t, tg)
            for x in post: a(x)
            self.last = 0; self.pre_done = False; return
        if self.mem and not self.pre_done and self.last >= self.space - 1:
            pre = self.mem[0][0]
            for x in pre: a(x)
            slots -= len(pre); self.pre_done = True
        while slots > 0 and self.fill:
            t, tg = self.fill.pop(0); a(t, tg); slots -= 1
    def flush_fill(self, tags=None):
        while self.fill and (tags is None or any(tg in tags for _, tg in self.fill)):
            t, tg = self.fill.pop(0); a(t, tg)
    def flush_mem(self, tags=None):
        while self.mem and (tags is None or any(it[2] in tags for it in self.mem)):
            pre, t, tg, post = self.mem.pop(0)
            if not self.pre_done:
                for x in pre: a(x)
            a(t, tg)
            for x in post: a(x)
            self.pre_done = False; self.last = 0
    def take_mem(self):
        if self.pre_done:
            pre, t, tg, post = self.mem.pop(0); a(t, tg)
            for x in post: a(x)
            self.pre_done = False
        q = self.mem; self.mem = []; return q

def poll_begin():
    l = a.newl('poll'); a(f's_mov_b32 {sCNT}, 0'); a.label(l); return l
def poll_end(l):
    a(f's_add_u32 {sCNT}, {sCNT}, 1\ns_cmp_gt_u32 {sCNT}, {SPIN}\ns_cbranch_scc1 L_end\ns_cbranch_vccnz {l}')

t0, t1, t2, t3, t4, t5, t6, t7 = [vFr + i for i in range(8)]
vXs0, vXs1, vWs0, vWs1, vOs0, vOs1, vXr0, vXr1, vXr2, vXr3, vTrW, vTrO, vSt0, vSt1, vSt2, vSt3, vStz, vTa, vTf, vTd, vTp = [vWd + i for i in range(21)]
sI = sT[0]
a(f'''s_load_dwordx2 s[8:9], s[0:1], 0
s_load_dwordx2 s[12:13], s[0:1], 8
s_load_dwordx2 s[16:17], s[0:1], 16
s_load_dwordx2 s[20:21], s[0:1], 80
s_cmp_ge_u32 s2, 256
s_cbranch_scc1 L_end''')
stamp('start')
if DEBUG: a('s_memrealtime s[98:99]')
a(f'''s_getpc_b64 s[40:41]
v_lshrrev_b32 {v(t0)}, 6, v0
v_and_b32 {v(vLane)}, 63, v0
s_lshr_b32 {sI}, s2, 3
v_readfirstlane_b32 {sW}, {v(t0)}
s_mul_i32 s10, {sI}, {CODE_LANES*128}
v_lshl_add_u32 {v(t2)}, {v(vLane)}, 7, s10
s_mov_b64 exec, {(1 << CODE_LANES) - 1}''')
a(f'global_load_dword {v(vJunk)}, {v(t2)}, s[40:41]', 'junk')
sXr = [sT[3], sT[4], sT[5], sT[6], sT[7]]; sXl = sT[8]; sWl = sT[9]
a(f'''s_mov_b64 exec, -1
s_and_b32 {sM}, {sI}, 7
s_and_b32 {sG}, s2, 7
s_lshl_b32 {sG}, {sG}, 2
s_lshr_b32 s10, s2, 6
s_add_u32 {sG}, {sG}, s10
v_lshrrev_b32 {v(vG)}, 4, {v(vLane)}
v_lshrrev_b32 {v(t0)}, 3, {v(vLane)}
v_and_b32 {v(t1)}, 7, {v(vLane)}
s_and_b32 s14, {sW}, 1
s_lshr_b32 s15, {sW}, 1
s_add_u32 s10, s15, {sM}
s_and_b32 s10, s10, 7
s_lshl_b32 s10, s10, 3
s_lshl_b32 s11, s14, 2
s_add_u32 s10, s10, s11
v_xor_b32 {v(t2)}, {v(t1)}, {v(vG)}
v_xor_b32 {v(t2)}, s10, {v(t2)}
v_lshlrev_b32 {v(t2)}, 4, {v(t2)}
v_lshl_add_u32 {v(vXs0)}, {v(t0)}, 11, {v(t2)}
v_xor_b32 {v(vXs1)}, 64, {v(vXs0)}
s_mul_i32 {sXl}, {sW}, 5120
s_and_b32 s10, {sG}, 15
s_lshl_b32 s10, s10, 17
s_mul_i32 s11, s14, {40*2048}
s_add_u32 s10, s10, s11
s_lshr_b32 s11, {sG}, 4
s_lshl_b32 s11, s11, 10
s_add_u32 {sXr[2]}, s10, s11
s_add_u32 {sXr[3]}, {sXr[2]}, {16384 - 1024}
s_add_u32 {sXr[4]}, {sXr[2]}, {32768 - 2048}
s_sub_u32 {sXr[0]}, {sXr[2]}, 32768
s_cselect_b32 {sXr[0]}, {sXr[2]}, {sXr[0]}
s_add_u32 {sXr[1]}, {sXr[0]}, {16384 - 1024}
s_mov_b32 s10, 0x200000
s_mov_b32 s11, 0x20000''')
def x_items(aa):
    it = []
    for j in range(5):
        pre = []
        if j == 0: pre = [f's_add_u32 m0, {sXl}, {aa*20480}']
        if j == 2: pre = [f's_add_u32 m0, {sXl}, {aa*20480 + 2048}']
        post = []
        if j == 4 and aa < 3:
            post = [f'v_add_u32 {v(vT)}, 256, {v(vXs0)}', f'v_bfi_b32 {v(vXs0)}, {sT[1]}, {v(vT)}, {v(vXs0)}', f'v_xor_b32 {v(vXs1)}, 64, {v(vXs0)}']
        off = (0, 1024, 0, 1024, 2048)[j]
        it.append((pre, f'buffer_load_dwordx4 {v(vXs1 if j & 1 else vXs0)}, {rX}, {sXr[j]} offen offset:{off} lds', f'X{aa}', post))
    return it
a(f's_movk_i32 {sT[1]}, 0x380\ns_waitcnt lgkmcnt(0)')
for it in x_items(0): run_item(it)
stamp('x0')
a(f'''s_load_dwordx2 s[24:25], s[0:1], 40
s_load_dwordx2 s[28:29], s[0:1], 48
s_load_dwordx2 s[32:33], s[0:1], 56
s_load_dwordx2 s[36:37], s[0:1], 64
s_load_dwordx2 s[40:41], s[0:1], 72
s_load_dwordx2 s[42:43], s[0:1], 32
v_and_b32 {v(vQ)}, 15, {v(vLane)}
v_cmp_eq_u32 vcc, 0, {v(vG)}
v_mov_b32 {v(t2)}, {sI}
v_mov_b32 {v(t3)}, {sG}
v_cndmask_b32 {v(t2)}, {v(t2)}, {v(t3)}, vcc
v_lshl_add_u32 {v(t2)}, {v(t2)}, 4, {v(vQ)}
v_mov_b32 {v(t3)}, {sM}
v_cndmask_b32 {v(t3)}, 3, {v(t3)}, vcc
s_movk_i32 s14, 3072
s_lshl_b32 s15, {sW}, 10
s_cmp_eq_u32 {sW}, 3
s_cselect_b32 s14, 1024, s14
s_cselect_b32 s15, 0, s15
s_cselect_b64 s[44:45], s[16:17], s[12:13]
v_mul_u32_u24 {v(t2)}, s14, {v(t2)}
v_lshl_add_u32 {v(t3)}, {v(t3)}, 7, s15
v_add_u32 {v(t2)}, {v(t2)}, {v(t3)}
s_mov_b32 exec_hi, 0''')
a(f'global_load_dword {v(vJunk)}, {v(t2)}, s[44:45]', 'junk')
a('s_mov_b64 exec, -1')
for it in x_items(1): run_item(it)

for d, n in ((14, 0x180000), (18, 0x80000), (22, WS_BYTES), (26, 512*2752), (30, 512*2752), (34, 1376*1024), (38, 0x200000)):
    a(f's_mov_b32 s{d}, {n}\ns_mov_b32 s{d+1}, 0x20000')
a(f'''v_lshlrev_b32 {v(vL16)}, 4, {v(vLane)}
s_lshl_b32 s0, {sM}, 7
v_lshl_add_u32 {v(t6)}, {v(vG)}, 4, s0
s_waitcnt lgkmcnt(0)''')
vWr = vAcc
a(f'global_load_dwordx4 {v(vLf,4)}, {v(t6)}, {pWR}', 'WR')
a(f'global_load_dwordx4 {v(vLf+4,4)}, {v(t6)}, {pWR} offset:64', 'WR')
a(f'global_load_dwordx4 {v(vWr,4)}, {v(vL16)}, {pWR}', 'WR')
a(f'''v_and_b32 {v(t2)}, 1, {v(vG)}
v_lshlrev_b32 {v(t2)}, 1, {v(t2)}
v_xor_b32 {v(t2)}, {v(t1)}, {v(t2)}
v_lshl_add_u32 {v(t2)}, {v(t2)}, 4, s0
s_lshl_b32 s1, {sW}, 4
v_add_u32 {v(t3)}, s1, {v(t0)}
v_mul_u32_u24 {v(t4)}, 3072, {v(t3)}
v_add_u32 {v(vWs0)}, {v(t4)}, {v(t2)}
v_xor_b32 {v(t5)}, 64, {v(t2)}
v_add_u32 {v(t4)}, {8*3072}, {v(t4)}
v_add_u32 {v(vWs1)}, {v(t4)}, {v(t5)}
v_lshl_add_u32 {v(vOs0)}, {v(t3)}, 10, {v(t2)}
v_lshl_add_u32 {v(vOs1)}, {v(t3)}, 10, {v(t5)}
v_add_u32 {v(vOs1)}, {8*1024 - 1024}, {v(vOs1)}
s_mul_i32 {sWl}, {sW}, 6144
s_add_u32 {sWl}, {sWl}, {RING}''')
sWo = sT[10]; sOo = sT[11]; sOl = sT[2]
a(f's_mul_i32 {sWo}, {sM}, {64*3072}\ns_lshl_b32 {sOo}, {sM}, 16\ns_lshl_b32 {sOl}, {sW}, 11')
def w_items(c):
    it = []
    for h in range(2):
        for part in range(3):
            pre = [f's_add_u32 m0, {sWl}, {(c % 3) * 24576 + h * 3072}'] if part == 0 else []
            if h == 0 and part == 0 and c > 0:
                pre = [f's_add_u32 {sWo}, {sWo}, {64*3072}', f's_cmp_eq_u32 {sWo}, {512*3072}', f's_cselect_b32 {sWo}, 0, {sWo}'] + pre
            it.append((pre, f'buffer_load_dwordx4 {v(vWs1 if h else vWs0)}, {rW}, {sWo} offen offset:{part*1024} lds', f'W{c}', []))
    return it
def wo_items(c):
    pre = [f's_add_u32 m0, {sOl}, {c*8192}']
    if c > 0: pre = [f's_add_u32 {sOo}, {sOo}, 65536', f's_and_b32 {sOo}, {sOo}, 0x7ffff'] + pre
    return [(pre, f'buffer_load_dwordx4 {v(vOs0)}, {rWO}, {sOo} offen lds', 'WO', []),
            ([], f'buffer_load_dwordx4 {v(vOs1)}, {rWO}, {sOo} offen offset:1024 lds', 'WO', [])]
for i in range(4): a(f'v_mov_b32 {v(vOnes+i)}, 0x3f803f80')
a(f'''v_add_u32 {v(vL16b)}, 65536, {v(vL16)}
v_add_u32 {v(vOwn)}, {OWN}, {v(vL16)}
v_lshrrev_b32 {v(t2)}, 1, {v(vQ)}
v_xor_b32 {v(t3)}, {v(vG)}, {v(t2)}
v_lshlrev_b32 {v(t3)}, 4, {v(t3)}
v_lshl_add_u32 {v(vXr0)}, {v(vQ)}, 7, {v(t3)}
v_xor_b32 {v(vXr1)}, 64, {v(vXr0)}
v_add_u32 {v(vXr2)}, 40960, {v(vXr0)}
v_add_u32 {v(vXr3)}, 40960, {v(vXr1)}
s_add_u32 s1, {sOl}, 2048
v_add_u32 {v(vSt0)}, s1, {v(vXr0)}
v_add_u32 {v(vSt1)}, s1, {v(vXr1)}
v_add_u32 {v(vSt2)}, s1, {v(vXr2)}
v_add_u32 {v(vSt3)}, s1, {v(vXr3)}
s_lshr_b32 s0, {sW}, 1
s_mul_i32 s0, s0, 10240
s_and_b32 s1, {sW}, 1
s_lshl_b32 s1, s1, 6
v_xor_b32 {v(vStz)}, s1, {v(vXr0)}
v_add_u32 {v(vStz)}, s0, {v(vStz)}''')
a(f'''v_lshrrev_b32 {v(t3)}, 1, {v(vG)}
s_lshl_b32 s0, {sW}, 1
v_add_u32 {v(t3)}, s0, {v(t3)}
v_xor_b32 {v(t3)}, {v(t3)}, {v(t2)}
v_lshlrev_b32 {v(t3)}, 4, {v(t3)}
v_lshl_add_u32 {v(t3)}, {v(vQ)}, 7, {v(t3)}
v_and_b32 {v(t4)}, 1, {v(vG)}
v_lshl_add_u32 {v(vT+1)}, {v(t4)}, 3, {v(t3)}
v_mul_u32_u24 {v(t3)}, 10240, {v(t0)}
v_lshl_add_u32 {v(vT+2)}, {v(t1)}, 4, {v(t3)}''')
a(f'''v_lshrrev_b32 {v(t2)}, 2, {v(vQ)}
v_lshrrev_b32 {v(t3)}, 3, {v(vQ)}
v_lshl_or_b32 {v(t3)}, {v(t4)}, 1, {v(t3)}
v_xor_b32 {v(t3)}, {sW}, {v(t3)}
v_lshlrev_b32 {v(t3)}, 5, {v(t3)}
v_lshl_add_u32 {v(t3)}, {v(t2)}, 7, {v(t3)}
v_and_b32 {v(t4)}, 3, {v(vLane)}
v_lshl_add_u32 {v(t3)}, {v(t4)}, 3, {v(t3)}
v_mul_u32_u24 {v(t5)}, 3072, {v(vG)}
v_add_u32 {v(t5)}, {RING}, {v(t5)}
v_add_u32 {v(vTrW)}, {v(t5)}, {v(t3)}
v_lshl_add_u32 {v(vTrO)}, {v(vG)}, 10, {v(t3)}
v_cmp_eq_u32 {mDIAG}, {v(t2)}, {v(vG)}
v_and_b32 {v(t3)}, 1, {v(vLane)}
v_cmp_eq_u32 {mQ1}, 1, {v(t3)}
v_and_b32 {v(t3)}, 2, {v(vLane)}
v_cmp_eq_u32 {mQ2}, 2, {v(t3)}''')
sJ0 = 's1'
a(f'''s_lshr_b32 s0, {sG}, 2
s_min_u32 {sJ0}, s0, 3
s_mul_i32 {sJ}, s0, 5
s_add_u32 {sJ0}, {sJ0}, {sJ}
s_cmp_lt_u32 s0, 3
s_cselect_b32 s0, 6, 5
s_and_b32 {sJ}, {sG}, 3
s_and_b32 {sCNT}, {sM}, 4
s_add_u32 {sJ}, {sJ}, {sCNT}
s_cmp_lt_u32 {sJ}, s0
s_cselect_b32 s0, 1, 7
s_add_u32 {sJ}, {sJ}, {sJ0}
s_and_b32 {sCNT}, {sM}, 3
s_cmp_eq_u32 {sCNT}, s0
s_cselect_b32 {sJ}, {sJ}, -1
s_mul_i32 {sPr}, {sG}, {8*PRS}
s_add_u32 {sPr}, {sPr}, {PR}
s_mul_i32 {sGr}, {sG}, {GRS}
s_add_u32 {sGr}, {sGr}, {GR}
s_getreg_b32 {sXCC}, hwreg(HW_REG_XCC_ID)
s_and_b32 {sXCC}, {sXCC}, 15''')
a(f'''s_lshl_b32 s0, {sI}, 2
s_add_u32 s0, s0, {sW}
s_lshl_b32 {sCNT}, s0, 2
v_add_u32 {v(t3)}, {sCNT}, {v(t2)}
v_mul_u32_u24 {v(t3)}, 2752, {v(t3)}
s_lshl_b32 {sCNT}, {sJ0}, 6
v_lshl_add_u32 {v(t5)}, {v(t4)}, 7, {sCNT}
v_add_u32 {v(vTf)}, {v(t3)}, {v(t5)}
s_mul_i32 s0, s0, 1536
s_lshl_b32 {sCNT}, {sJ0}, 15
s_add_u32 s0, s0, {sCNT}
v_lshl_add_u32 {v(vTd)}, {v(vLane)}, 7, s0
s_mul_i32 s0, {sG}, 81920
s_lshl_b32 s1, {sM}, 11
s_lshl_b32 {sCNT}, {sW}, 9
s_add_u32 {sCNT}, {sCNT}, s1
s_add_u32 {sCNT}, {sCNT}, s0
v_lshrrev_b32 {v(t3)}, 2, {v(vLane)}
v_lshlrev_b32 {v(t3)}, 14, {v(t3)}
v_lshl_add_u32 {v(t3)}, {v(t4)}, 7, {v(t3)}
v_add_u32 {v(vTa)}, {sCNT}, {v(t3)}''')
a(f'''v_lshrrev_b32 {v(t2)}, 1, {v(vG)}
v_lshlrev_b32 {v(t2)}, 8, {v(t2)}
v_lshl_add_u32 {v(t2)}, {v(vQ)}, 4, {v(t2)}
v_and_b32 {v(t3)}, 1, {v(vG)}
v_lshl_add_u32 {v(vPubG)}, {v(t3)}, 14, {v(t2)}
v_add_u32 {v(vPubG)}, {sCNT}, {v(vPubG)}
v_lshl_add_u32 {v(vPubL)}, {v(t3)}, 11, {v(t2)}
s_lshl_b32 {sCNT}, {sW}, 9
s_add_u32 {sCNT}, {sCNT}, {OWN}
v_add_u32 {v(vPubL)}, {sCNT}, {v(vPubL)}
s_mul_i32 {sCNT}, {sW}, 3584
s_add_u32 s1, s1, {sCNT}
v_add_u32 {v(t2)}, s1, {v(vL16)}''')
for j in range(4):
    a(f'''v_add_u32 {v(t3)}, {2048 + j*1024}, {v(t2)}
v_and_b32 {v(t3)}, 0x3fff, {v(t3)}
s_add_u32 s1, s0, {4096 - j*1024}
v_add_u32 {v(vDma+j)}, s1, {v(t3)}''')
a(f'''v_lshlrev_b32 {v(t2)}, 4, {v(vQ)}
v_add_u32 {v(vSQ)}, {SQ}, {v(t2)}
v_lshlrev_b32 {v(t3)}, 4, {v(vG)}
v_add_u32 {v(vVS)}, {VM}, {v(t3)}
s_mul_i32 s0, {sM}, {PRS}
s_add_u32 s0, s0, {sPr}
s_lshl_b32 s1, {sW}, 8
s_add_u32 s1, s1, s0
v_add_u32 {v(vStP)}, s1, {v(t2)}
v_and_b32 {v(t3)}, 31, {v(vLane)}
v_lshl_add_u32 {v(vFlag)}, {v(t3)}, 2, {sGr}
s_lshl_b32 s1, {sW}, 10
s_add_u32 s0, s0, s1
s_cmp_eq_u32 {sW}, 3
s_cselect_b32 s1, 8, 7
s_cselect_b32 {sCNT}, {sGr}, s0
v_lshlrev_b32 {v(vTp)}, s1, {v(vLane)}
v_add_u32 {v(vTp)}, {sCNT}, {v(vTp)}
v_add_u32 {v(vT+3)}, s0, {v(vL16)}
v_lshlrev_b32 {v(t3)}, 8, {v(t0)}
v_lshl_add_u32 {v(t3)}, {v(t1)}, 4, {v(t3)}
v_add_u32 {v(vT+4)}, {sGr}, {v(t3)}
v_mov_b32 {v(vVf)}, 0
v_mov_b32 {v(vVf+1)}, 0''')
a(f'''v_lshlrev_b32 {v(t2)}, 2, {v(vG)}
v_sub_u32 {v(t2)}, {v(vQ)}, {v(t2)}
v_mov_b32 {v(t3)}, {NEG:#x}
v_mov_b32 {v(t6)}, 0xffff
v_mov_b32 {v(t7)}, 0xffff0000
s_and_b32 s0, {sG}, 15
s_cmp_eq_u32 s0, 0
s_cselect_b64 {mT0}, -1, 0''')
for r in range(4):
    a(f'''v_subrev_u32 {v(t4)}, {r}, {v(t2)}
v_cmp_gt_u32 vcc, 8, {v(t4)}
v_cmp_gt_i32 s[0:1], -8, {v(t4)}
v_cmp_le_i32 {mT}, 0, {v(t4)}
v_cndmask_b32 {v(vBc+r)}, {v(t3)}, 0, vcc
v_cndmask_b32 {v(vBp+r)}, {v(t3)}, 0, s[0:1]''')
    if r % 2 == 0: a(f'v_cndmask_b32 {v(vMc + r//2)}, 0, {v(t6)}, {mT}')
    else: a(f'v_cndmask_b32 {v(t5)}, 0, {v(t7)}, {mT}\nv_or_b32 {v(vMc + r//2)}, {v(vMc + r//2)}, {v(t5)}')
stamp('prolog')

def touch(addr, rsrc, soff, nl):
    m = (1 << nl) - 1
    return ([], f's_mov_b64 exec, {m:#x}\nbuffer_load_dword {v(vJunk)}, {v(addr)}, {rsrc}, {soff} offen', 'junk', ['s_mov_b64 exec, -1'])

sS1, sS2, zS1, zS2 = vQf, vQf + 4, vKf, vKf + 4
for aa in range(4):
    a.wait(vm=f'X{aa}')
    a('s_barrier')
    if aa == 0: stamp('xa')
    for i in range(4):
        base = (vSt0, vSt1, vSt2, vSt3)[(i & 1) + (2 if aa >= 2 else 0)]
        a(f'ds_read_b128 {v(vFr+4*i,4)}, {v(base)} offset:{(2*(aa&1) + (i>>1))*10240}', f'S{i}')
    a(f'ds_read_b128 {v(vFr+16,4)}, {v(vStz)} offset:{aa*20480}', 'S4')
    if aa == 0:
        for tt in range(5): a(f'ds_read_b64 {v(vRes+4*tt+2,2)}, {v(vT+1)} offset:{tt*2048}', 'R')
    if aa == 3: a(f'ds_write_b128 {v(vT+2)}, {v(vOnes,4)}', 'ones')
    for it in (x_items(aa + 2) if aa < 2 else w_items(aa - 2)): run_item(it)
    for i in range(5):
        s1, s2 = (sS1, sS2) if i < 4 else (zS1, zS2)
        first = aa == 0 and i in (0, 4)
        fr = v(vFr + 4*i, 4)
        a.wait(lg=f'S{i}')
        a(f'{MF32} {v(s1,4)}, {v(vOnes,4)}, {fr}, {0 if first else v(s1,4)}')
        a(f'{MF32} {v(s2,4)}, {fr}, {fr}, {0 if first else v(s2,4)}')
    if aa == 0:
        a.wait(lg='R')
        for tt in range(5):
            b = vRes + 4*tt
            a(f'''v_lshlrev_b32 {v(b)}, 16, {v(b+2)}
v_and_b32 {v(b+1)}, 0xffff0000, {v(b+2)}
v_lshlrev_b32 {v(b+2)}, 16, {v(b+3)}
v_and_b32 {v(b+3)}, 0xffff0000, {v(b+3)}''')
    if aa == 1:
        vm1 = vFr + 20
        lc3, lcw, lcd = a.newl('c3'), a.newl('cw'), a.newl('cd')
        for i in range(4): a(f'v_mov_b32 {v(vm1+i)}, -1')
        a.track = False
        a(f'''s_cmp_eq_u32 {sW}, 3
s_cbranch_scc1 {lc3}
buffer_store_dwordx4 {v(vm1,4)}, {v(vT+3)}, {rWS}, 0 offen sc1
s_branch {lcd}''')
        a.label(lc3)
        a(f'''s_cmp_eq_u32 {sM}, 0
s_cbranch_scc0 {lcw}
buffer_store_dwordx4 {v(vm1,4)}, {v(vT+4)}, {rWS}, 0 offen sc1''')
        a.label(lcw)
        a(f'''s_cmp_lt_i32 {sJ}, 0
s_cbranch_scc1 {lcd}
s_lshl_b32 s0, {sJ}, 10
s_add_u32 s0, s0, {YP}
s_add_u32 s1, s0, {YP_L}
buffer_store_dwordx4 {v(vm1,4)}, {v(vL16)}, {rWS}, s0 offen sc1
buffer_store_dwordx4 {v(vm1,4)}, {v(vL16)}, {rWS}, s1 offen sc1''')
        a.label(lcd)
        a.track = True
    if aa == 2:
        a.wait(vm='WR')
        for i in range(8): a(f'v_cndmask_b32 {v(vLf+i)}, {v(vOnes)}, {v(vLf+i)}, {mQ1}')
        a(f'{MF32} {v(vWr+4,4)}, {v(vOnes,4)}, {v(vWr,4)}, 0')
        for sh in (8, 4, 2, 1): a(f'v_add_f32_dpp {v(vWr+4)}, {v(vWr+4)}, {v(vWr+4)} row_ror:{sh} {DPP}')
        a(f'v_readfirstlane_b32 {sSW}, {v(vWr+4)}')
stamp('xdone')

def diag_select(dst, src):
    a(f'''v_cndmask_b32 {v(src)}, {v(src)}, {v(src+1)}, {mQ1}
v_cndmask_b32 {v(src+2)}, {v(src+2)}, {v(src+3)}, {mQ1}
v_cndmask_b32 {v(dst)}, {v(src)}, {v(src+2)}, {mQ2}''')
def ln_basic(s1, s2, negm, var, rstd):
    a(f'''v_mul_f32 {v(negm)}, 0xbb000000, {v(s1)}
v_mul_f32 {v(var)}, 0x3b000000, {v(s2)}
v_fma_f32 {v(var)}, -{v(negm)}, {v(negm)}, {v(var)}
v_max_f32 {v(var)}, 0, {v(var)}
v_add_f32 {v(rstd)}, 0x3727c5ac, {v(var)}
v_rsq_f32 {v(rstd)}, {v(rstd)}''')
def xread(n, tt):
    c, s = n >> 1, n & 1
    base = (vXr0, vXr1, vXr2, vXr3)[s + (2 if c >= 4 else 0)]
    return (f'ds_read_b128 {v(vFr + (n & 1)*20 + 4*tt, 4)}, {v(base)} offset:{(c & 3)*10240 + tt*2048}', f'x{n}')
def trread(n):
    c, s = n >> 1, n & 1
    return [(f'ds_read_b64_tr_b16 {ag(wfrag(n, part) + 2*hh, 2)}, {v(vTrW)} offset:{(c % 3)*24576 + s*12288 + part*1024 + hh*512}', f'w{n}')
            for part in range(3) for hh in range(2)]
def qkv_mfma(tt, part, ks, fr, first):
    d = v(acc(tt, part), 4); w = ag(wfrag(ks, part), 4)
    A, B = (w, fr) if part < 2 else (fr, w)
    return f'{MF32} {d}, {A}, {B}, {0 if first else d}'
for tt in range(5): a(*xread(0, tt))
diag_select(sS1 + 1, sS2)
diag_select(zS1 + 1, zS2)
ln_basic(sS1, sS1 + 1, vT, vT + 2, vT + 1)
a(f'''s_lshl_b32 s0, {sW}, 7
s_add_u32 s0, s0, {T0P}
v_lshl_add_u32 {v(vT+3)}, {v(vQ)}, 3, s0
s_lshl_b32 s0, {sW}, 8
v_add_u32 {v(vT+4)}, s0, {v(vSQ)}
s_lshl_b32 s0, {sW}, 6
s_add_u32 s0, s0, {VM + 64}
v_lshl_add_u32 {v(vT+5)}, {v(vQ)}, 2, s0
s_mov_b64 exec, {mDIAG}''')
a(f'ds_write_b64 {v(vT+3)}, {v(zS1,2)}', 'sw')
a(f'ds_write_b64 {v(vT+4)}, {v(vT,2)} offset:256', 'sw')
a(f'ds_write2_b32 {v(vT+5)}, {v(vT)}, {v(vT+1)} offset0:0 offset1:80', 'sw')
a(f'''s_mov_b64 exec, -1
v_lshlrev_b32 {v(vT+3)}, 3, {v(vQ)}
v_add_u32 {v(vT+3)}, {T0P}, {v(vT+3)}
v_lshlrev_b32 {v(vT+5)}, 2, {v(vQ)}
v_add_u32 {v(vT+5)}, {VM}, {v(vT+5)}
v_lshlrev_b32 {v(vT+6)}, 2, {v(vLane)}''')

vSm = vFr + 40
def vms(tt): return (vFr + 8*tt) if tt < 2 else (vFr + 20 + 8*(tt - 2)) if tt < 4 else vFr
def cqr(tt): return vSm + 2*tt + 1
def epi_reads(tiles, q=True):
    r = []
    if q: r += [(f'ds_read_b64 {v(vSm+2*tt,2)}, {v(vSQ)} offset:{tt*256}', 'eq') for tt in range(5)]
    for tt in tiles:
        r.append((f'ds_read_b128 {v(vms(tt),4)}, {v(vVS)} offset:{tt*64}', f'e{tt}'))
        r.append((f'ds_read_b128 {v(vms(tt)+4,4)}, {v(vVS)} offset:{320 + tt*64}', f'e{tt}'))
    return r

S = Sched()
def stage_w(c):
    S.flush_mem({f'W{c}', f'W{c+1}'})
    a.wait(vm=f'W{c}', lg='sw')
    a('s_barrier')
    if c in (0, 7): stamp(f'w{c}')
    S.fill.extend(trread(2*c)); S.fill.extend(trread(2*c + 1))
    if c + 2 <= 7: S.mem.extend(w_items(c + 2))
    if c == 1:
        lg_ = a.newl('go')
        a.track = False
        a(f'''s_lshl_b32 s0, {sM}, 2
s_add_u32 s0, s0, {sW}
s_cmp_eq_u32 s0, 3
s_cbranch_scc0 {lg_}
s_lshl_b32 s0, {sG}, 1
s_lshl_b64 exec, 1, s0
global_store_dword {v(vT+6)}, {v(vOnes)}, {pDBG} sc1
s_mov_b64 exec, -1''')
        a.label(lg_)
        a.track = True
    if c == 5:
        S.mem.append(([f's_mov_b32 s0, {TA}'] + touch(vTa, rWS, 's0', 20)[0],) + touch(vTa, rWS, 's0', 20)[1:])
        S.mem.append(touch(vTp, rWS, 0, 8))
        for i in range(6): S.mem.extend(wo_items(i))
    if c >= 6: S.mem.extend(wo_items(c))
    if c == 7:
        S.mem.append(([], f'global_load_dword {v(vGo)}, {v(vT+6)}, {pDBG} sc1', 'go', []))
        S.mem.extend([touch(vTf, rWG, 0, 16), touch(vTf, rWU, 0, 16), touch(vTd, rWD, 0, 12)])
stage_w(0)
for i in range(4): a(f'ds_read_b64 {v(vQf+2*i,2)}, {v(vT+3)} offset:{128*i}', 'z')
S.flush_fill({'w0'})
a.wait(lg='z')
a(f'''v_pk_add_f32 {v(vQf,2)}, {v(vQf,2)}, {v(vQf+2,2)}
v_pk_add_f32 {v(vQf+4,2)}, {v(vQf+4,2)}, {v(vQf+6,2)}
v_pk_add_f32 {v(vQf,2)}, {v(vQf,2)}, {v(vQf+4,2)}''')
ln_basic(vQf, vQf + 1, vT, vT + 2, vT + 1)
a(f'ds_write_b64 {v(vSQ)}, {v(vT,2)}', 'sw')
a(f'ds_write2_b32 {v(vT+5)}, {v(vT)}, {v(vT+1)} offset0:0 offset1:80', 'sw')
for n in range(16):
    for tt in range(5):
        for part in range(3):
            pos = n * 15 + tt * 3 + part
            if tt == 0 and part == 0:
                S.flush_fill({f'x{n}', f'w{n}'})
                a.wait(lg=[f'x{n}', f'w{n}'])
                S.fill[0:0] = [xread(n + 1, t_) for t_ in range(5)] if n < 15 else epi_reads((0, 1))
            if (pos + DEFER) % 30 == 0 and (pos + DEFER) // 30 <= 7: stage_w((pos + DEFER) // 30)
            a(qkv_mfma(tt, part, n, v(vFr + (n & 1)*20 + 4*tt, 4), n == 0))
            if n == 15 and tt == 2 and part == 0:
                for r in range(4):
                    S.fill.append((f'v_mov_b32_dpp {v(vCsQ+r)}, {v(acc(0,0)+r)} row_newbcast:0 {DPP}', None))
                    S.fill.append((f'v_mov_b32_dpp {v(vCsK+r)}, {v(acc(0,1)+r)} row_newbcast:0 {DPP}', None))
                S.fill += [(f'v_mov_b32 {v(vCsV)}, {v(acc(0,2))}', None), (f'v_mov_b32 {v(vCsV+1)}, {v(acc(0,2))}', None)]
            S.gap()
S.flush_fill()
a(f'''v_permlane16_swap_b32 {v(vCsV)}, {v(vCsV+1)}''')
for r in epi_reads((2, 3), False): a(*r)
a(f'''v_mov_b32 {v(vCsV+1)}, {v(vCsV)}
v_permlane32_swap_b32 {v(vCsV)}, {v(vCsV+1)}''')
stamp('gemm1')

def ln_pk(aq, ak, av, sm, vs):
    for h in range(2):
        if aq is not None: a(f'v_pk_fma_f32 {v(aq+2*h,2)}, {v(vCsQ+2*h,2)}, {v(sm,2)}, {v(aq+2*h,2)} op_sel_hi:[1,0,1]')
        a(f'v_pk_fma_f32 {v(ak+2*h,2)}, {v(vCsK+2*h,2)}, {v(sm,2)}, {v(ak+2*h,2)} op_sel_hi:[1,0,1]')
        if vs is None: a(f'v_pk_fma_f32 {v(av+2*h,2)}, {v(vCsV,2)}, {v(sm,2)}, {v(av+2*h,2)} op_sel_hi:[0,0,1]')
        else: a(f'v_pk_fma_f32 {v(av+2*h,2)}, {v(vCsV,2)}, {v(vs+2*h,2)}, {v(av+2*h,2)} op_sel_hi:[0,1,1]')
    for h in range(2):
        a(f'v_pk_mul_f32 {v(ak+2*h,2)}, {v(ak+2*h,2)}, {v(sm,2)} op_sel:[0,1] op_sel_hi:[1,1]')
        if vs is None: a(f'v_pk_mul_f32 {v(av+2*h,2)}, {v(av+2*h,2)}, {v(sm,2)} op_sel:[0,1] op_sel_hi:[1,1]')
        else: a(f'v_pk_mul_f32 {v(av+2*h,2)}, {v(av+2*h,2)}, {v(vs+4+2*h,2)}')
def cvt2(dst, src): return [f'v_cvt_pk_bf16_f32 {v(dst+h)}, {v(src+2*h)}, {v(src+2*h+1)}' for h in range(2)]
def sc(tt): return acc(tt, 0)
def sp(tt): return acc(tt, 1)
vB1 = vT + 4
def s_mfmas(tt):
    r = [f'{MF16} {v(sc(tt),4)}, {v(vKf+2*tt,2)}, {v(vQf+2*tt,2)}, {v(vBc,4)}']
    if tt > 0: r.append(f'{MF16} {v(sp(tt),4)}, {v(vKf+2*tt-2,2)}, {v(vQf+2*tt,2)}, {v(vB1 if tt == 1 else vBp,4)}')
    return r
def bias1():
    a(f'v_mov_b32 {v(vT)}, {NEG:#x}')
    for r in range(4): a(f'v_cndmask_b32 {v(vB1+r)}, {v(vBp+r)}, {v(vT)}, {mT0}')
def epilogue(qtiles, fuse_scores):
    for tt in range(5):
        a.wait(lg=['eq', f'e{tt}'])
        hq = tt in qtiles
        ln_pk(acc(tt,0) if hq else None, acc(tt,1), acc(tt,2), vSm+2*tt, vms(tt))
        if tt == 0:
            for r in epi_reads((4,), False): a(*r)
        body = (cvt2(vQf+2*tt, acc(tt,0)) if hq else []) + cvt2(vKf+2*tt, acc(tt,1)) + cvt2(vVf+2+2*tt, acc(tt,2))
        if hq: body.append(f'v_mul_f32 {v(cqr(tt))}, 0x3eb8aa3b, {v(cqr(tt))}')
        m = s_mfmas(tt - 1) if fuse_scores and (tt - 1) in qtiles else []
        if m: body = [m[0]] + body[:2] + m[1:] + body[2:]
        for x in body: a(x)
vMx = vFr; vMy = vFr + 6; vPb = vFr + 12; vPk = vFr + 32; vPK = vQf
def pkr(tt): return vPk + 2*tt if tt < 4 else vFr + 50
def attention(tiles, pending):
    for tt in pending:
        for x in s_mfmas(tt): a(x)
    for tt in tiles:
        s = sc(tt)
        if tt > 0:
            for r in range(4): a(f'v_max_f32 {v(s+r)}, {v(s+r)}, {v(sp(tt)+r)}')
        a(f'v_max3_f32 {v(vMx+tt)}, {v(s)}, {v(s+1)}, {v(s+2)}\nv_max_f32 {v(vMx+tt)}, {v(vMx+tt)}, {v(s+3)}')
        a(f'v_mov_b32 {v(vMy+tt)}, {v(vMx+tt)}')
    for tt in tiles: a(f'v_permlane32_swap_b32 {v(vMx+tt)}, {v(vMy+tt)}')
    for tt in tiles: a(f'v_max_f32 {v(vMx+tt)}, {v(vMx+tt)}, {v(vMy+tt)}\nv_mov_b32 {v(vMy+tt)}, {v(vMx+tt)}')
    for tt in tiles: a(f'v_permlane16_swap_b32 {v(vMx+tt)}, {v(vMy+tt)}')
    for tt in tiles:
        s = sc(tt); mx = vMx + tt; hi = mx & 1
        a(f'v_max_f32 {v(mx)}, {v(mx)}, {v(vMy+tt)}\nv_mul_f32 {v(mx)}, {v(mx)}, {v(cqr(tt))}')
        for h in range(2):
            a(f'v_pk_fma_f32 {v(s+2*h,2)}, {v(s+2*h,2)}, {v(cqr(tt)-1,2)}, {v(mx-hi,2)} op_sel:[0,1,{hi}] op_sel_hi:[1,1,{hi}] neg_lo:[0,0,1] neg_hi:[0,0,1]')
    prev = []
    for tt in tiles:
        s = sc(tt)
        body = [f'v_exp_f32 {v(s+r)}, {v(s+r)}' for r in range(4)]
        body = prev[:1] + body[:1] + prev[1:] + body[1:]
        body += cvt2(pkr(tt), s)
        for h in range(2):
            body.append(f'v_bfi_b32 {v(vPb+4*tt+h)}, {v(vMc+h)}, 0, {v(pkr(tt)+h)}')
            body.append(f'v_and_b32 {v(vPb+4*tt+2+h)}, {v(vMc+h)}, {v(pkr(tt)+h)}')
        for x in body: a(x)
        prev = [f'{MF16} {v(sp(tt),4)}, {v(vOnes,2)}, {v(pkr(tt),2)}, 0', f'{MF32} {v(s,4)}, {v(vVf+2*tt,4)}, {v(vPb+4*tt,4)}, 0']
    for x in prev: a(x)
    for tt in tiles: a(f'v_rcp_f32 {v(sp(tt))}, {v(sp(tt))}')
    for tt in tiles:
        o = sc(tt); pk = vPK + 2*TILE_ORD.index(tt)
        for h in range(2): a(f'v_pk_mul_f32 {v(o+2*h,2)}, {v(o+2*h,2)}, {v(sp(tt),2)} op_sel_hi:[1,0]')
        for x in cvt2(pk, o): a(x)
def pub_swap(npr):
    for pr in range(npr):
        a(f'v_permlane16_swap_b32 {v(vPK+4*pr)}, {v(vPK+4*pr+2)}\nv_permlane16_swap_b32 {v(vPK+4*pr+1)}, {v(vPK+4*pr+3)}')
def pub_store(npr, gbase, fl, lds=False):
    for pr, tile in list(enumerate((1, 3, 0)))[:npr]:
        if pr == 2: a('s_mov_b32 exec_lo, 0xffff\ns_mov_b32 exec_hi, 0xffff')
        if gbase is not None:
            a(f's_mov_b32 s0, {gbase + tile*16384}')
            a(f'buffer_store_dwordx4 {v(vPK+4*pr,4)}, {v(vPubG)}, {rWS}, s0 offen {fl}', 'pub')
        if lds: a(f'ds_write_b128 {v(vPubL)}, {v(vPK+4*pr,4)} offset:{tile*2048}', 'own')
    if npr == 3: a('s_mov_b64 exec, -1')
def flag_prep():
    a(f's_lshl_b32 s0, {sM}, 2\ns_add_u32 s0, s0, {sW}\ns_lshl_b64 {mT}, 1, s0\nv_mov_b32 {v(vT)}, {sXCC}')
def flag_store(line, fl):
    a(f's_mov_b64 exec, {mT}')
    a(f'buffer_store_dword {v(vT)}, {v(vFlag)}, {rWS}, 0 offen offset:{line*256} {fl}', 'flag')
    a('s_mov_b64 exec, -1')
def flag_wait(line):
    l = poll_begin()
    a(f'buffer_load_dword {v(vT+1)}, {v(vFlag)}, {rWS}, 0 offen offset:{line*256} sc1', 'poll')
    a.wait(vm='all')
    a(f'v_cmp_eq_u32 vcc, -1, {v(vT+1)}')
    poll_end(l)
sTl = sT[0]; sTo = sT[1]
def tile_items(gbase, tt):
    it = []
    for j in range(4):
        pre = [f's_add_u32 m0, {sTl}, {tt*16384 + 2048}', f's_mov_b32 {sTo}, {gbase - 4096 + tt*16384}'] if j == 0 else []
        post = []
        if j == 3: pre = ['s_mov_b32 exec_hi, 0']; post = ['s_mov_b32 exec_hi, -1']
        it.append((pre, f'buffer_load_dwordx4 {v(vDma+j)}, {rWS}, {sTo} offen offset:{j*1024} sc1 lds', f'T{tt}', post))
    return it
def tread(tt, ks, dst):
    if ks < 2: return f'ds_read_b128 {v(dst,4)}, {v(vOwn)} offset:{tt*2048 + ks*1024}'
    return f'ds_read_b128 {v(dst,4)}, {v(vL16b if tt == 4 else vL16)} offset:{(tt & 3)*16384 + ks*1024}'
def wo_mfma(tt, ks, fr):
    d = v(vRes + 4*tt, 4)
    return f'{MF32} {d}, {ag(wofrag(ks),4)}, {v(fr,4)}, {d}'
def wo_own(tiles):
    for i, tt in enumerate(tiles):
        for ks in range(2): a(tread(tt, ks, vFr + 8*i + 4*ks), f'oo{tt}')
    for i, tt in enumerate(tiles):
        a.wait(lg=f'oo{tt}')
        for ks in range(2): a(wo_mfma(tt, ks, vFr + 8*i + 4*ks))
def wo_gemm(tiles, extra):
    NR = 12
    for tt in tiles[:2]:
        for it in tile_items(TA, tt): run_item(it)
    mem = [it for tt in tiles[2:] for it in tile_items(TA, tt)] + extra
    seq = [(tt, ks) for tt in tiles for ks in range(2, 16)]
    for i in range(len(seq) + LAG2):
        if i < len(seq):
            tt, ks = seq[i]
            if ks == 2:
                while any(it[2] == f'T{tt}' for it in mem): run_item(mem.pop(0))
                a.wait(vm=f'T{tt}'); a('s_barrier')
            a(tread(tt, ks, vFr + 4*(i % NR)), f'o{i}')
        k = i - LAG2
        if k >= 0:
            if k % 2 == 0: a.wait(lg=[f'o{k}', f'o{k+1}'])
            a(wo_mfma(seq[k][0], seq[k][1], vFr + 4*(k % NR)))
        if mem and i % 3 == 1: run_item(mem.pop(0))
    for it in mem: run_item(it)

def stats_and_router(p):
    tiles = [1, 2, 3, 4] + ([0] if p == 0 else [])
    npr = 3 - p
    for tt in tiles:
        for x in cvt2(vPK + 2*TILE_ORD.index(tt), vRes + 4*tt): a(x)
    pub_swap(npr)
    pub_store(npr, None, '', lds=True)
    if p == 0: both_modes(lambda fl: pub_store(npr, TB, fl))
    a(f's_lshl_b32 s0, {sW}, 11\nv_add_u32 {v(vT)}, s0, {v(vOwn)}')
    a.wait(lg='own')
    a('s_barrier')
    fa, fz, dl, dg, zl, zg = vFr, vFr + 8, vFr + 16, vFr + 20, vFr + 24, vFr + 28
    for s in range(2): a(f'ds_read_b128 {v(fa+4*s,4)}, {v(vT)} offset:{2048 + s*1024}', 'fa')
    if p == 0:
        for s in range(2): a(f'ds_read_b128 {v(fz+4*s,4)}, {v(vOwn)} offset:{s*1024}', 'fz')
    a(f'''s_cmp_eq_u32 {sW}, 0
s_cselect_b32 s0, 63, 15
s_cselect_b32 s1, 256, 0
v_and_b32 {v(vT+1)}, s0, {v(vLane)}
v_lshl_add_u32 {v(vT+1)}, {v(vT+1)}, 4, s1''')
    for (f_, l_, g_, tag) in ((fa, dl, dg, 'fa'), (fz, zl, zg, 'fz'))[:2 - p]:
        a.wait(lg=tag)
        for s in range(2): a(f'{MF32} {v(g_,4)}, {v(f_+4*s,4)}, {v(f_+4*s,4)}, {0 if s == 0 else v(g_,4)}')
        for s in range(2): a(f'{MF32} {v(l_,4)}, {v(vLf+4*s,4)}, {v(f_+4*s,4)}, {0 if s == 0 else v(l_,4)}')
    diag_select(dl + 2, dg)
    a(f'v_mov_b32 {v(dl+3)}, 0')
    if p == 0:
        diag_select(zl + 2, zg)
        a(f'v_mov_b32 {v(zl+3)}, 0\ns_cmp_eq_u32 {sW}, 0\ns_cselect_b64 {mT}, {mDIAG}, 0')
    def st(fl):
        a(f's_mov_b64 exec, {mDIAG}')
        a(f'buffer_store_dwordx4 {v(dl,4)}, {v(vStP)}, {rWS}, 0 offen offset:{PR_ST[p] + 256} {fl}', 'stp')
        if p == 0:
            lz = a.newl('nz')
            a(f's_mov_b64 exec, {mT}\ns_cbranch_execz {lz}')
            tr = a.track; a.track = False
            a(f'buffer_store_dwordx4 {v(zl,4)}, {v(vStP)}, {rWS}, 0 offen {fl}')
            a.track = tr
            a.label(lz)
        a('s_mov_b64 exec, -1')
    both_modes(st)
    stamp(f'stp{p}')
    lsk, ljn = a.newl('nog'), a.newl('jn')
    a(f's_cmp_gt_u32 {sW}, {1 - p}\ns_cbranch_scc1 {lsk}')
    a.track = False
    gg = vFr
    l = poll_begin()
    for i in range(8):
        if i % 2 == 0: a(f's_add_u32 s0, {sPr}, {PR_ST[p] + i*PRS}')
        a(f'buffer_load_dwordx4 {v(gg+4*i,4)}, {v(vT+1)}, {rWS}, s0 offen offset:{(i & 1)*PRS} sc1')
    a(f'''s_waitcnt vmcnt(5)
v_or3_b32 {v(vT)}, {v(gg+3)}, {v(gg+7)}, {v(gg+11)}
v_pk_add_f32 {v(gg,2)}, {v(gg,2)}, {v(gg+4,2)}
v_add_f32 {v(gg+2)}, {v(gg+2)}, {v(gg+6)}
v_pk_add_f32 {v(gg,2)}, {v(gg,2)}, {v(gg+8,2)}
v_add_f32 {v(gg+2)}, {v(gg+2)}, {v(gg+10)}''')
    for i in (3, 5):
        a(f'''s_waitcnt vmcnt({6 - i})
v_or3_b32 {v(vT)}, {v(vT)}, {v(gg+4*i+3)}, {v(gg+4*i+7)}
v_pk_add_f32 {v(gg,2)}, {v(gg,2)}, {v(gg+4*i,2)}
v_add_f32 {v(gg+2)}, {v(gg+2)}, {v(gg+4*i+2)}
v_pk_add_f32 {v(gg,2)}, {v(gg,2)}, {v(gg+4*i+4,2)}
v_add_f32 {v(gg+2)}, {v(gg+2)}, {v(gg+4*i+6)}''')
    a(f'''s_waitcnt vmcnt(0)
v_or_b32 {v(vT)}, {v(vT)}, {v(gg+31)}
v_cmp_ne_u32 vcc, 0, {v(vT)}
v_pk_add_f32 {v(gg,2)}, {v(gg,2)}, {v(gg+28,2)}
v_add_f32 {v(gg+2)}, {v(gg+2)}, {v(gg+30)}''')
    poll_end(l)
    stamp(f'stg{p}')
    q4, rr, rs, var, mx = vFr + 4, vFr + 8, vFr + 9, vFr + 10, vFr + 11
    ln_basic(gg, gg + 2, q4, var, rs)
    a(f'''v_fma_f32 {v(rr)}, {v(q4)}, {sSW}, {v(gg+1)}
v_mul_f32 {v(rr)}, {v(rr)}, {v(rs)}
v_add_f32 {v(q4+2)}, 1.0, {v(rs)}
v_mul_f32 {v(q4+3)}, {v(q4)}, {v(rs)}
v_max_f32_dpp {v(mx)}, {v(rr)}, {v(rr)} row_ror:8 {DPP}
v_mul_f32 {v(vT)}, {v(q4+2)}, {v(q4+2)}
v_fmaak_f32 {v(vT)}, {v(vT)}, {v(var)}, 0x3727c5ac
v_max_f32_dpp {v(mx)}, {v(mx)}, {v(mx)} row_ror:4 {DPP}
v_rsq_f32 {v(vT)}, {v(vT)}
v_add_u32 {v(vT+2)}, {SQ}, {v(vT+1)}
v_max_f32_dpp {v(mx)}, {v(mx)}, {v(mx)} row_ror:2 {DPP}
v_mul_f32 {v(q4+1)}, {v(q4+2)}, {v(vT)}
v_lshrrev_b32 {v(vT+3)}, 2, {v(vT+1)}
v_max_f32_dpp {v(mx)}, {v(mx)}, {v(mx)} row_ror:1 {DPP}
v_add_u32 {v(vT+3)}, {VM}, {v(vT+3)}
v_mov_b32 {v(mx+1)}, {v(mx)}
ds_write_b128 {v(vT+2)}, {v(q4,4)}
ds_write2_b32 {v(vT+3)}, {v(q4)}, {v(q4+1)} offset0:0 offset1:80''')
    if p == 0: a(f's_cmp_eq_u32 {sW}, 0\ns_cbranch_scc0 {lsk}')
    a(f'''v_permlane32_swap_b32 {v(mx)}, {v(mx+1)}
v_lshrrev_b32 {v(vT+2)}, 2, {v(vLane)}
v_max_f32 {v(mx)}, {v(mx)}, {v(mx+1)}
v_mov_b32 {v(mx+1)}, {v(mx)}
v_lshlrev_b32 {v(vT+2)}, 8, {v(vT+2)}
v_and_b32 {v(vT+3)}, 3, {v(vLane)}
v_permlane16_swap_b32 {v(mx)}, {v(mx+1)}
v_lshl_add_u32 {v(vT+2)}, {v(vT+3)}, 2, {v(vT+2)}
v_max_f32 {v(mx)}, {v(mx)}, {v(mx+1)}
v_cmp_eq_f32 vcc, {v(rr)}, {v(mx)}
s_lshl_b32 s0, {sG}, 6
v_add_u32 {v(rr+1+8)}, s0, {v(vLane)}
s_ff1_i32_b64 s1, vcc
s_and_b32 s1, s1, 63
s_lshr_b32 s0, s1, 4
s_mul_i32 s0, s0, {2048 - 256}
s_lshl_b32 {sCNT}, s1, 4
s_add_u32 s0, s0, {sCNT}
s_add_u32 s0, s0, {OWN + 2048}
v_add_u32 {v(vT+2)}, s0, {v(vT+2)}
s_mov_b32 exec_hi, 0
ds_read_b32 {v(vT+3)}, {v(vT+2)}
s_mov_b64 exec, -1
v_mov_b32 {v(rr+8)}, {v(rr)}
v_readlane_b32 {sT[2]}, {v(rs)}, s1
v_readlane_b32 {sT[3]}, {v(q4+3)}, s1
v_mov_b32 {v(vT)}, 0''')
    lrg = a.newl('nrg')
    a(f'''s_cmp_eq_u32 {sM}, 0
s_cbranch_scc0 {lrg}
s_lshl_b64 exec, 1, s1
buffer_store_dwordx2 {v(rr+8,2)}, {v(vT)}, {rWS}, {sGr} offen offset:{(4+p)*256} sc1
s_mov_b64 exec, -1''')
    a.label(lrg)
    a(f'''s_mul_i32 s0, {sM}, {PRS}
s_add_u32 s0, s0, {sPr}
v_lshlrev_b32 {v(vT)}, 2, {v(vLane)}
v_mov_b32 {v(vT+1)}, {sT[3]}
s_mov_b32 exec_hi, 0
s_waitcnt lgkmcnt(0)
v_lshlrev_b32 {v(vT+2)}, 16, {v(vT+3)}
v_and_b32 {v(vT+3)}, 0xffff0000, {v(vT+3)}
v_fma_f32 {v(vT+2)}, {v(vT+2)}, {sT[2]}, {v(vT+1)}
v_fma_f32 {v(vT+3)}, {v(vT+3)}, {sT[2]}, {v(vT+1)}
v_cvt_pk_bf16_f32 {v(vT+3)}, {v(vT+2)}, {v(vT+3)}
buffer_store_dword {v(vT+3)}, {v(vT)}, {rWS}, s0 offen offset:{PR_CA[p]} sc1
s_mov_b64 exec, -1''')
    stamp(f'cand{p}')
    a(f's_branch {ljn}')
    a.label(lsk)
    a('s_waitcnt vmcnt(0)')
    a.label(ljn)
    a('s_waitcnt lgkmcnt(0)')
    a.track = True
    a.vmq = []; a.lgq = []

def res_update(vAb):
    for tt in range(1, 5):
        for h in range(2):
            b = vRes + 4*tt + 2*h
            a(f'v_pk_fma_f32 {v(b,2)}, {v(b,2)}, {v(vAb+2*tt,2)}, {v(vAb+2*tt,2)} op_sel:[0,0,1] op_sel_hi:[1,0,1]')

def rg_wait(pexpr):
    a(f'v_and_b32 {v(vT)}, 31, {v(vLane)}\nv_mul_u32_u24 {v(vT)}, {GRS}, {v(vT)}')
    if pexpr is None: a(f's_lshl_b32 s0, {sP}, 8\ns_add_u32 s0, s0, {GR + 1024}')
    else: a(f's_mov_b32 s0, {GR + 1024 + 256*pexpr}')
    l = poll_begin()
    a(f'buffer_load_dwordx2 {v(vT+2,2)}, {v(vT)}, {rWS}, s0 offen sc1')
    a(f's_waitcnt vmcnt(0)\nv_cmp_eq_u32 vcc, -1, {v(vT+3)}')
    poll_end(l)
    a(f'v_max_f32_dpp {v(vT+1)}, {v(vT+2)}, {v(vT+2)} row_ror:8 {DPP}')
    for sh in (4, 2, 1): a(f'v_max_f32_dpp {v(vT+1)}, {v(vT+1)}, {v(vT+1)} row_ror:{sh} {DPP}')
    a(f'''v_mov_b32 {v(vT)}, {v(vT+1)}
v_permlane16_swap_b32 {v(vT)}, {v(vT+1)}
v_max_f32 {v(vT+1)}, {v(vT)}, {v(vT+1)}
v_cmp_eq_f32 vcc, {v(vT+2)}, {v(vT+1)}
s_ff1_i32_b32 s1, vcc_lo
s_and_b32 s1, s1, 31
v_readlane_b32 {sWI}, {v(vT+3)}, s1
v_readlane_b32 {sWR}, {v(vT+2)}, s1''')

bias1_done = False
a.bg = S.take_mem(); a.bgn = 8
go_pending = any(it[2] == 'go' for it in a.bg)
if go_pending:
    while any(it[2] == 'go' for it in a.bg):
        q = a.bg; a.bg = None; run_item(q.pop(0)); a.bg = q
bias1()
epilogue((0, 1, 2, 3, 4), True)
stamp('epi0')
attention([0, 1, 2, 3, 4], [4])
q = a.bg; a.bg = None
for it in q or []: run_item(it)
stamp('attn0')
pub_swap(3)
pub_store(3, TA, '', lds=True)
flag_prep()
a(f's_mul_i32 {sTl}, {sW}, 3584\ns_mov_b32 {sMode}, 0')
a.wait(vm='all', lg='all')
stamp('oack0')
lgo, lgb = a.newl('gow'), a.newl('gob')
a(f'''v_cmp_eq_u32 vcc, 0, {v(vGo)}
s_andn2_b64 vcc, vcc, {mQ1}
s_cbranch_vccnz {lgo}''')
a.label(lgb)
def go_wait():
    a.label(lgo)
    l = poll_begin()
    a(f'''v_lshlrev_b32 {v(vT+1)}, 2, {v(vLane)}
global_load_dword {v(vGo)}, {v(vT+1)}, {pDBG} sc1
s_waitcnt vmcnt(0)
v_cmp_eq_u32 vcc, 0, {v(vGo)}
s_andn2_b64 vcc, vcc, {mQ1}''')
    poll_end(l)
    a(f's_branch {lgb}')
cold.append(go_wait)
flag_store(0, '')
a('s_barrier')
for ks in range(16):
    for hh in range(2): a(f'ds_read_b64_tr_b16 {ag(wofrag(ks)+2*hh,2)}, {v(vTrO)} offset:{ks*4096 + hh*512}', 'tro')
wo_own([0, 1, 2, 3, 4])
a.wait(lg='all')
a('s_barrier')
lfa, lfs, lfd = a.newl('fa'), a.newl('fs'), a.newl('fd')
a(f's_mov_b32 {sCNT}, 0')
a.label(lfa)
a(f'buffer_load_dword {v(vT+1)}, {v(vFlag)}, {rWS}, 0 offen sc1', 'poll')
a(f's_add_u32 {sCNT}, {sCNT}, 1\ns_cmp_gt_u32 {sCNT}, 48')
a.wait(vm='all')
a(f's_cbranch_scc1 {lfs}\nv_cmp_ne_u32 vcc, {sXCC}, {v(vT+1)}\ns_cbranch_vccnz {lfa}')
a.label(lfd)
def slow_a():
    a.label(lfs)
    pub_store(3, TA, 'sc1')
    a('s_waitcnt vmcnt(0)')
    flag_store(1, 'sc1')
    l = poll_begin()
    a(f'''buffer_load_dword {v(vT+1)}, {v(vFlag)}, {rWS}, 0 offen sc1
buffer_load_dword {v(vT+2)}, {v(vFlag)}, {rWS}, 0 offen offset:256 sc1
s_waitcnt vmcnt(0)
v_cmp_ne_u32 vcc, {sXCC}, {v(vT+1)}
s_cbranch_vccz {lfd}
s_sleep 8
v_cmp_eq_u32 vcc, -1, {v(vT+2)}''')
    poll_end(l)
    a(f'''v_cmp_ne_u32 vcc, {sXCC}, {v(vT+2)}
s_cbranch_vccz {lfd}
s_mov_b32 {sMode}, 1
s_branch {lfd}''')
cold.append(slow_a)
stamp('oflag0')
tb = touch(vTa, rWS, 's0', 20)
wo_gemm([0, 1, 2, 3, 4], [([f's_mov_b32 s0, {TB}'] + tb[0],) + tb[1:]])
stamp('wo0')
stats_and_router(0)
flag_prep()
both_modes(lambda fl: flag_store(2, fl))

def parts(tt): return (1, 2) if tt == 0 else (0, 1, 2)
for tt in range(5):
    for ks in range(2): a(tread(tt, ks, vFr + 8*tt + 4*ks), f'oo{tt}')
for tt in range(5):
    a.wait(lg=f'oo{tt}')
    for ks in range(2):
        for part in parts(tt): a(qkv_mfma(tt, part, ks, v(vFr + 8*tt + 4*ks, 4), ks == 0))
flag_wait(2)
stamp('xflag')
for tt in (0, 1):
    for it in tile_items(TB, tt): run_item(it)

xf = vQf
fg = vFr + 16
fw = vFr + 32
def ffn_gu_addr():
    a(f'''v_lshrrev_b32 {v(vT)}, 2, {v(vLane)}
s_lshl_b32 s0, {sW}, 7
v_add_u32 {v(vT)}, s0, {v(vT)}
v_mul_u32_u24 {v(vT)}, 2752, {v(vT)}
v_and_b32 {v(vT+1)}, 3, {v(vLane)}
v_and_b32 {v(vT+2)}, 2, {v(vG)}
v_xor_b32 {v(vT+1)}, {v(vT+1)}, {v(vT+2)}
v_lshl_add_u32 {v(vT+7)}, {v(vT+1)}, 4, {v(vT)}
s_lshl_b32 {sT[4]}, {sJ}, 6
s_lshl_b32 {sT[5]}, {sW}, 13''')
def ffn_gu_block(i):
    l = a.newl('gu')
    a.track = False
    a(f'''s_cmp_lt_i32 {sJ}, 0
s_cbranch_scc1 {l}
s_add_u32 m0, {sT[5]}, {WGL + i*1024}
s_nop 0
buffer_load_dwordx4 {v(vT+7)}, {rWG}, {sT[4]} offen lds
s_add_u32 m0, {sT[5]}, {WUL + i*1024}
s_nop 0
buffer_load_dwordx4 {v(vT+7)}, {rWU}, {sT[4]} offen lds
s_add_u32 {sT[4]}, {sT[4]}, {16*2752}''')
    a.label(l)
    a.track = True
def ffn_row_load():
    a(f'''s_lshr_b32 s0, {sWI}, 6
s_mul_i32 s0, s0, {8*PRS}
s_mul_i32 s1, {sW}, {2*PRS}
s_add_u32 s0, s0, s1
s_lshl_b32 s1, {sP}, 7
s_add_u32 s0, s0, s1
s_add_u32 {sT[4]}, s0, {PR + PR_CA[0]}
v_lshlrev_b32 {v(vT+5)}, 4, {v(vG)}''')
    a.label('L_rowld')
    for s in range(4): a(f'buffer_load_dwordx4 {v(xf+4*s,4)}, {v(vT+5)}, {rWS}, {sT[4]} offen offset:{(s >> 1)*PRS + (s & 1)*64} sc1')
def hook1():
    l = a.newl('h1')
    a.track = False
    a(f's_cmp_lt_i32 {sJ}, 0\ns_cbranch_scc1 {l}')
    a.label('L_ffn_a')
    rg_wait(None)
    stamp('rg0')
    a(f's_mov_b32 {sCNT}, 0')
    ffn_row_load()
    a(f's_or_b32 s0, {sP}, {sCNT}\ns_cbranch_scc1 L_ffn_b')
    a(f'''v_lshlrev_b32 {v(vT+1)}, 1, {v(vG)}
v_xor_b32 {v(vT+1)}, {v(vQ)}, {v(vT+1)}
v_lshlrev_b32 {v(vT+1)}, 4, {v(vT+1)}
v_lshl_add_u32 {v(vT+1)}, {v(vG)}, 10, {v(vT+1)}
v_xor_b32 {v(vT+2)}, 128, {v(vT+1)}
s_lshl_b32 s0, {sJ}, 15
s_lshl_b32 s1, {sW}, 8
s_add_u32 s0, s0, s1''')
    for i in range(8):
        a(f's_add_u32 m0, {sT[5]}, {WDL + i*1024}')
        if i: a('s_add_u32 s0, s0, 4096')
        a(f'buffer_load_dwordx4 {v(vT+2 if (i >> 1) & 1 else vT+1)}, {rWD}, s0 offen lds')
    a.label(l)
    a.track = True
def hook2():
    l = a.newl('h2')
    a.track = False
    a(f's_cmp_lt_i32 {sJ}, 0\ns_cbranch_scc1 {l}')
    a(f'''v_lshrrev_b32 {v(vT+1)}, 2, {v(vQ)}
v_and_b32 {v(vT+2)}, 1, {v(vG)}
v_lshl_or_b32 {v(vT+2)}, {v(vT+2)}, 2, {v(vT+1)}
v_lshlrev_b32 {v(vT+2)}, 5, {v(vT+2)}
v_and_b32 {v(vT+3)}, 3, {v(vLane)}
v_lshlrev_b32 {v(vT+3)}, 4, {v(vT+3)}
v_xor_b32 {v(vT+2)}, {v(vT+2)}, {v(vT+3)}
v_lshl_add_u32 {v(vT+1)}, {v(vG)}, 3, {v(vT+1)}
v_lshl_add_u32 {v(vT+1)}, {v(vT+1)}, 8, {sT[5]}
s_waitcnt vmcnt(0)''')
    for i in range(4):
        a(f'v_xor_b32 {v(vT+3)}, {64*i}, {v(vT+2)}\nv_add_u32 {v(vT+3)}, {v(vT+1)}, {v(vT+3)}')
        for tb_ in range(2):
            for hh in range(2):
                a(f'ds_read_b64_tr_b16 {v(vWd + (2*i+tb_)*4 + 2*hh, 2)}, {v(vT+3)} offset:{WDL + hh*1024 + tb_*8}')
    a.label('L_ffn_b')
    a(f'''v_lshrrev_b32 {v(vT+1)}, 2, {v(vQ)}
v_lshl_add_u32 {v(vT+1)}, {v(vG)}, 3, {v(vT+1)}
v_lshlrev_b32 {v(vT+1)}, 6, {v(vT+1)}
v_and_b32 {v(vT+2)}, 3, {v(vLane)}
v_lshl_add_u32 {v(vT+1)}, {v(vT+2)}, 3, {v(vT+1)}
v_and_b32 {v(vT+2)}, 1, {v(vG)}
v_lshl_add_u32 {v(vT+1)}, {v(vT+2)}, 5, {v(vT+1)}
s_add_u32 s1, {sT[5]}, {RING}
v_add_u32 {v(vT+1)}, s1, {v(vT+1)}
v_xor_b32 {v(vT+2)}, 32, {v(vT+1)}''')
    def wr(s, k):
        u, ft = k >> 1, k & 1
        return [f'ds_read_b64_tr_b16 {v(fw + 4*k + 2*hh, 2)}, {v(vT+2 if ft else vT+1)} offset:{(WUL if u else WGL) - RING + s*2048 + hh*256}' for hh in range(2)]
    for k in range(4):
        for x in wr(0, k): a(x)
    a(f'''s_lshl_b32 s1, {sW}, 8
s_add_u32 s1, s1, {RED}
v_add_u32 {v(vT+3)}, s1, {v(vT+5)}
v_lshrrev_b32 {v(vT+4)}, 3, {v(vQ)}
v_lshl_add_u32 {v(vT+4)}, {v(vT+4)}, 2, {v(vG)}
v_and_b32 {v(vT)}, 7, {v(vQ)}
v_lshl_add_u32 {v(vT+4)}, {v(vT+4)}, 3, {v(vT)}
v_lshlrev_b32 {v(vT+4)}, 2, {v(vT+4)}
v_add_u32 {v(vT+4)}, {RED}, {v(vT+4)}
s_waitcnt vmcnt(0)''')
    for s in range(4):
        for k in range(4):
            d = v(fg + 4*k, 4)
            a(f's_waitcnt lgkmcnt({6 if s < 3 else 6 - 2*k})')
            a(f'{MF32} {d}, {v(fw+4*k,4)}, {v(xf+4*s,4)}, {0 if s == 0 else d}')
            if s < 3:
                for x in wr(s + 1, k): a(x)
    a('s_mov_b32 exec_lo, 0x10001\ns_mov_b32 exec_hi, 0x10001')
    for k in range(4): a(f'ds_write_b128 {v(vT+3)}, {v(fg+4*k,4)} offset:{64*k}')
    h = fw
    a(f'''s_mov_b64 exec, -1
s_waitcnt lgkmcnt(0)
s_barrier
ds_read2st64_b32 {v(h,2)}, {v(vT+4)} offset0:0 offset1:1
ds_read2st64_b32 {v(h+2,2)}, {v(vT+4)} offset0:2 offset1:3
v_lshlrev_b32 {v(vT+1)}, 6, {v(vQ)}
v_add_u32 {v(vT+1)}, {v(vT+1)}, {v(vT+5)}
s_lshl_b32 s0, {sJ}, 10
s_mul_i32 s1, {sP}, {YP_L}
s_add_u32 s0, s0, s1
s_lshl_b32 s1, {sW}, 8
s_add_u32 s0, s0, s1
s_add_u32 s0, s0, {YP}
s_add_u32 {sCNT}, {sCNT}, 1
s_cmp_lt_u32 {sCNT}, 2000
s_waitcnt lgkmcnt(0)
v_add_f32 {v(h)}, {v(h)}, {v(h+1)}
v_add_f32 {v(h+2)}, {v(h+2)}, {v(h+3)}
v_add_f32 {v(h)}, {v(h)}, {v(h+2)}
v_cmp_u_f32 vcc, {v(h)}, {v(h)}
v_mul_f32 {v(h+2)}, 0xbfb8aa3b, {v(h)}
s_cselect_b64 vcc, vcc, 0
s_cbranch_vccnz L_rowretry
v_exp_f32 {v(h+2)}, {v(h+2)}
v_mul_f32_dpp {v(h)}, {v(h)}, {v(h)} row_ror:8 {DPP}
v_add_f32 {v(h+2)}, 1.0, {v(h+2)}
v_rcp_f32 {v(h+2)}, {v(h+2)}
v_mul_f32 {v(h)}, {v(h)}, {v(h+2)}''')
    def retry():
        a.label('L_rowretry'); a('s_barrier\ns_branch L_rowld')
    cold.append(retry)
    for j in range(8): a(f'v_mov_b32_dpp {v(h+4+j)}, {v(h)} row_newbcast:{j} {DPP}')
    for j in range(4): a(f'v_cvt_pk_bf16_f32 {v(h+12+j)}, {v(h+4+2*j)}, {v(h+5+2*j)}')
    yd = [xf, xf+4, xf+8, xf+12, fg, fg+4, fg+8, fg+12]
    for ct in range(8): a(f'{MF32} {v(yd[ct],4)}, {v(vWd+4*ct,4)}, {v(h+12,4)}, 0')
    for i in range(4):
        a(f's_mov_b32 exec_lo, {0x10001 << i:#x}\ns_mov_b32 exec_hi, {0x10001 << i:#x}')
        for hh in range(4): a(f'v_cvt_pk_bf16_f32 {v(h+hh)}, {v(yd[2*i]+2*hh)}, {v(yd[2*i]+2*hh+1)}')
    a(f'''s_mov_b32 exec_lo, 0xf000f
s_mov_b32 exec_hi, 0xf000f
buffer_store_dwordx4 {v(h,4)}, {v(vT+1)}, {rWS}, s0 offen sc1
s_mov_b64 exec, -1
s_cmp_lg_u32 {sP}, 0
s_cbranch_scc1 L_ffn_done1''')
    stamp('ffn0')
    a.label(l)
    a.track = True

ffn_gu_addr()
a(f's_mov_b32 {sP}, 0')
NR3, LAG3 = 4, 3
seq = [(tt, ks) for tt in range(5) for ks in range(2, 16)]
mem = [it for tt in (2, 3, 4) for it in tile_items(TB, tt)]
def p3_read(i):
    tt, ks = seq[i]
    if ks == 2:
        while any(it[2] == f'T{tt}' for it in mem): run_item(mem.pop(0))
        a.wait(vm=f'T{tt}'); a('s_barrier')
    a(tread(tt, ks, vFr + 4*(i % NR3)), f'p{i}')
for i in range(LAG3): p3_read(i)
vAb = vFr + 14
for tt in range(1, 5): a(f'ds_read_b64 {v(vAb+2*tt,2)}, {v(vSQ)} offset:{tt*256 + 8}', 'ab')
a.wait(lg='ab')
res_update(vAb)
pos = 0; gu = 0; lastm = -9
for i, (tt, ks) in enumerate(seq):
    a.wait(lg=f'p{i}')
    for pi, part in enumerate(parts(tt)):
        if pos == HOOK1:
            assert gu == 8
            hook1()
        if pos == HOOK2: hook2()
        a(qkv_mfma(tt, part, ks, v(vFr + 4*(i % NR3), 4), False))
        pos += 1
        if pi == 0:
            if i + LAG3 < len(seq): p3_read(i + LAG3)
            elif i + LAG3 == len(seq):
                for r in epi_reads((2, 3)): a(*r)
        elif pi == 1 and pos - lastm >= 4:
            if mem: run_item(mem.pop(0)); lastm = pos
            elif gu < 8: ffn_gu_block(gu); gu += 1; lastm = pos + 2
assert gu == 8
for r in epi_reads((0, 1), False): a(*r)
stamp('gemm3')
bias1()
epilogue((1, 2, 3, 4), False)
stamp('epi1')

a.track = False
lk = a.newl('known')
a(f's_cmp_lt_i32 {sJ}, 0\ns_cbranch_scc0 {lk}')
rg_wait(0)
a.label(lk)
sTT, sQQ = sT[2], sT[3]
lown = a.newl('own')
a(f'''s_lshr_b32 s0, {sWI}, 6
s_and_b32 s1, {sWI}, 63
s_lshr_b32 {sTT}, s1, 4
s_add_u32 {sTT}, {sTT}, 1
s_and_b32 {sQQ}, s1, 15
s_cmp_eq_u32 s0, {sG}
s_cbranch_scc1 {lown}
s_add_u32 s0, s0, 1
s_cmp_eq_u32 s0, {sG}
s_cbranch_scc0 L_attn1
s_and_b32 s0, {sG}, 15
s_cbranch_scc0 L_attn1
s_cmp_ge_u32 s1, 57
s_cbranch_scc0 L_attn1
s_mov_b32 {sTT}, 0''')
a.label(lown)

def y_reduce(p):
    yl, se, yd, xo, ab = vAcc, vAcc + 24, vAcc + 28, vAcc + 32, vAcc + 36
    a(f'''v_and_b32 {v(vT+1)}, 7, {v(vQ)}
s_lshl_b32 s0, {sTT}, 11
s_lshl_b32 s1, {sQQ}, 4
s_add_u32 s0, s0, s1
s_add_u32 s0, s0, {OWN}
v_and_b32 {v(vT+2)}, 1, {v(vG)}
v_lshlrev_b32 {v(vT+2)}, 3, {v(vT+2)}
v_lshl_add_u32 {v(vT+3)}, {v(vT+1)}, 8, {v(vT+2)}
v_add_u32 {v(vT+3)}, s0, {v(vT+3)}
ds_read_b64 {v(xo+2,2)}, {v(vT+3)}
s_lshl_b32 s0, {sTT}, 8
s_add_u32 s0, s0, s1
s_add_u32 s0, s0, {SQ + 8}
v_mov_b32 {v(vT+3)}, s0
ds_read_b64 {v(ab,2)}, {v(vT+3)}
v_lshl_add_u32 {v(vT+2)}, {v(vT+1)}, 4, {v(vT+2)}
v_lshrrev_b32 {v(vT)}, 3, {v(vLane)}
v_lshlrev_b32 {v(vT)}, 10, {v(vT)}
v_lshl_add_u32 {v(vT)}, {v(vT+1)}, 4, {v(vT)}
v_mov_b32 {v(vT+3)}, 0x3f80
v_mov_b32 {v(se)}, 0x3f800000
v_cndmask_b32 {v(vT+3)}, {v(vT+3)}, {v(se)}, {mQ1}
v_lshrrev_b32 {v(vT+1)}, 1, {v(vT+1)}''')
    for i in range(4):
        a(f'v_cmp_eq_u32 vcc, {i}, {v(vT+1)}\nv_mov_b32 {v(yl+20+i)}, 0\nv_cndmask_b32 {v(se+i)}, 0, {v(vT+3)}, vcc')
    a(f'''v_mov_b32 {v(vT+1)}, {sWR}
v_mul_f32 {v(vT+1)}, 0xbfb8aa3b, {v(vT+1)}
v_exp_f32 {v(vT+1)}, {v(vT+1)}
s_waitcnt lgkmcnt(0)
v_lshlrev_b32 {v(xo)}, 16, {v(xo+2)}
v_add_f32 {v(vT+1)}, 1.0, {v(vT+1)}
v_rcp_f32 {v(vT+1)}, {v(vT+1)}
v_and_b32 {v(xo+1)}, 0xffff0000, {v(xo+2)}
v_lshlrev_b32 {v(xo+2)}, 16, {v(xo+3)}
v_and_b32 {v(xo+3)}, 0xffff0000, {v(xo+3)}''')
    for r in range(4): a(f'v_fma_f32 {v(xo+r)}, {v(xo+r)}, {v(ab)}, {v(ab+1)}')
    l = a.newl('yp')
    a(f's_mov_b32 {sCNT}, 0')
    a.label(l)
    a(f's_lshl_b32 s0, {sM}, 7\ns_add_u32 s0, s0, {YP + p*YP_L}')
    for i in range(6):
        if i == 5: a('s_mov_b64 exec, 0xffffff')
        a(f'buffer_load_dwordx4 {v(yl+4*i,4)}, {v(vT)}, {rWS}, s0 offen sc1')
        if i < 5: a('s_add_u32 s0, s0, 8192')
    a(f's_mov_b64 exec, -1\ns_add_u32 {sCNT}, {sCNT}, 1\ns_cmp_lt_u32 {sCNT}, {SPIN // 8}')
    for i in range(6):
        a(f's_waitcnt vmcnt({5-i})')
        a(f'{MF32} {v(yd,4)}, {v(se,4)}, {v(yl+4*i,4)}, {0 if i == 0 else v(yd,4)}')
    a(f'v_cmp_u_f32 vcc, {v(yd)}, {v(yd)}\ns_cselect_b64 vcc, vcc, 0\ns_cbranch_vccnz {l}')
    for r in range(4): a(f'v_add_f32_dpp {v(yd+r)}, {v(yd+r)}, {v(yd+r)} row_ror:8 {DPP}')
    for r in range(4): a(f'v_fmac_f32 {v(xo+r)}, {v(yd+r)}, {v(vT+1)}')
    for x in cvt2(xo, xo): a(x)
    return xo

lst2 = a.newl('st2')
a(f's_cmp_eq_u32 {sW}, 0\ns_cbranch_scc0 {lst2}')
xo = y_reduce(0)
a(f's_mul_i32 s0, {sM}, {PRS}\ns_add_u32 s0, s0, {sPr}')
def st_row(fl):
    a(f's_mov_b64 exec, 0xff00ff\nbuffer_store_dwordx2 {v(xo,2)}, {v(vT+2)}, {rWS}, s0 offen offset:{PR_ROW} {fl}\ns_mov_b64 exec, -1')
both_modes(st_row)
stamp('y0')
a.label(lst2)
rw = vAcc + 52
fq, fk, fv, fs, fy = vAcc, vAcc + 4, vAcc + 8, vAcc + 12, vAcc + 16
rf = vAcc + 20
a(f'''v_lshrrev_b32 {v(vT)}, 3, {v(vLane)}
v_add_u32 {v(vT)}, {sM}, {v(vT)}
v_and_b32 {v(vT)}, 7, {v(vT)}
v_mul_u32_u24 {v(vT)}, {PRS}, {v(vT)}
v_and_b32 {v(vT+1)}, 7, {v(vLane)}
v_lshl_add_u32 {v(vT)}, {v(vT+1)}, 4, {v(vT)}
v_add_u32 {v(vT+1)}, {ROW}, {v(vL16)}
v_lshlrev_b32 {v(vT+3)}, 4, {v(vG)}
v_add_u32 {v(vT+3)}, {ROW}, {v(vT+3)}
s_lshl_b32 s0, {sW}, 5
s_add_u32 s0, s0, {ROW}
v_lshl_add_u32 {v(vT+2)}, {v(vG)}, 3, s0
s_mov_b32 {sCNT}, 0''')
l = a.newl('rp'); a.label(l)
a(f'''buffer_load_dwordx4 {v(rw,4)}, {v(vT)}, {rWS}, {sPr} offen offset:{PR_ROW} sc1
s_add_u32 {sCNT}, {sCNT}, 1
s_cmp_lt_u32 {sCNT}, {SPIN}
s_waitcnt vmcnt(0)
v_max3_u32 {v(fs)}, {v(rw)}, {v(rw+1)}, {v(rw+2)}
v_max_u32 {v(fs)}, {v(fs)}, {v(rw+3)}
v_cmp_eq_u32 vcc, -1, {v(fs)}
s_cselect_b64 vcc, vcc, 0
s_cbranch_vccnz {l}
ds_write_b128 {v(vT+1)}, {v(rw,4)}''')
stamp('row0')
for i in range(8): a(f'ds_read_b128 {v(rf+4*i,4)}, {v(vT+3)} offset:{i*64}')
a(f'ds_read_b64 {v(fy+2,2)}, {v(vT+2)}')
st = [f'v_dot2_f32_bf16 {v(fs)}, {v(rw)}, {v(vOnes)}, 0', f'v_dot2_f32_bf16 {v(fs+1)}, {v(rw)}, {v(rw)}, 0']
for i in range(1, 4): st += [f'v_dot2_f32_bf16 {v(fs)}, {v(rw+i)}, {v(vOnes)}, {v(fs)}', f'v_dot2_f32_bf16 {v(fs+1)}, {v(rw+i)}, {v(rw+i)}, {v(fs+1)}']
for x in st: a(x)
st = []
for sh in (8, 4, 2, 1):
    for e in (0, 1): st.append(f'v_add_f32_dpp {v(fs+e)}, {v(fs+e)}, {v(fs+e)} row_ror:{sh} {DPP}')
for sw in ('32', '16'):
    st += [f'v_mov_b32 {v(fs+2)}, {v(fs)}', f'v_mov_b32 {v(fs+3)}, {v(fs+1)}', None,
           f'v_permlane{sw}_swap_b32 {v(fs)}, {v(fs+2)}', f'v_permlane{sw}_swap_b32 {v(fs+1)}, {v(fs+3)}',
           f'v_add_f32 {v(fs)}, {v(fs)}, {v(fs+2)}', f'v_add_f32 {v(fs+1)}, {v(fs+1)}, {v(fs+3)}']
st += [f'v_mul_f32 {v(fs+2)}, 0xbb000000, {v(fs)}', f'v_mul_f32 {v(fs+1)}, 0x3b000000, {v(fs+1)}', f'v_fma_f32 {v(fs+1)}, -{v(fs+2)}, {v(fs+2)}, {v(fs+1)}',
       f'v_max_f32 {v(fs+1)}, 0, {v(fs+1)}', f'v_add_f32 {v(fs+3)}, 0x3727c5ac, {v(fs+1)}', f'v_rsq_f32 {v(fs+3)}, {v(fs+3)}',
       f'v_lshlrev_b32 {v(fy)}, 16, {v(fy+2)}', f'v_and_b32 {v(fy+1)}, 0xffff0000, {v(fy+2)}', f'v_lshlrev_b32 {v(fy+2)}, 16, {v(fy+3)}', f'v_and_b32 {v(fy+3)}, 0xffff0000, {v(fy+3)}']
for ks in range(16):
    i = ks & 7
    a(f's_waitcnt lgkmcnt({8 if ks == 0 else 7 if ks <= 8 else 15 - ks})')
    for part, d in enumerate((fq, fk, fv)):
        w = ag(wfrag(ks, part), 4); fr = v(rf+4*i, 4)
        A, B = (w, fr) if part < 2 else (fr, w)
        a(f'{MF32} {v(d,4)}, {A}, {B}, {0 if ks == 0 else v(d,4)}')
        if ks > 0 and st and part < 2 + (ks >= 8):
            x = st.pop(0)
            if x: a(x)
    if ks < 8: a(f'ds_read_b128 {v(rf+4*i,4)}, {v(vT+3)} offset:{(8+i)*64}')
assert not st
nq, nk, nv = rf, rf + 2, rf + 4
a(f'''v_cmp_eq_u32 {mT}, {sQQ}, {v(vQ)}
s_lshr_b32 s0, {sQQ}, 2
v_cmp_eq_u32 vcc, s0, {v(vG)}
s_mov_b32 s1, 0xffff
s_bitcmp1_b32 {sQQ}, 0
s_cselect_b32 s0, 0xffff0000, s1
s_bitcmp1_b32 {sQQ}, 1
s_cselect_b32 s1, s0, 0
s_cselect_b32 s0, 0, s0''')
ln_pk(fq, fk, fv, fs + 2, None)
for x in cvt2(nq, fq) + cvt2(nk, fk) + cvt2(nv, fv)[:1]: a(x)
a(f'v_mul_f32 {v(fs+3)}, 0x3eb8aa3b, {v(fs+3)}')
for tt in range(5):
    ln_ = a.newl('pt')
    a(f's_cmp_eq_u32 {sTT}, {tt}\ns_cbranch_scc0 {ln_}\ns_mov_b64 exec, {mT}')
    for h in range(2):
        if tt: a(f'v_mov_b32 {v(vQf+2*tt+h)}, {v(nq+h)}')
        a(f'v_mov_b32 {v(vKf+2*tt+h)}, {v(nk+h)}')
    if tt:
        a(f'v_mov_b32 {v(cqr(tt))}, {v(fs+3)}')
        for r in range(4): a(f'v_mov_b32 {v(vRes+4*tt+r)}, {v(fy+r)}')
    a(f'''s_mov_b64 exec, vcc
v_bfi_b32 {v(vVf+2+2*tt)}, s0, {v(nv)}, {v(vVf+2+2*tt)}
v_bfi_b32 {v(vVf+3+2*tt)}, s1, {v(nv)}, {v(vVf+3+2*tt)}
s_mov_b64 exec, -1''')
    a.label(ln_)
a.track = True

a.label('L_attn1')
stamp('fix')
attention([1, 2, 3, 4], [1, 2, 3, 4])
stamp('attn1')
pub_swap(2)
both_modes(lambda fl: pub_store(2, TA, fl))
a('s_barrier')
pub_store(2, None, '', lds=True)
flag_prep()
a.wait(vm='all', lg='all')
both_modes(lambda fl: flag_store(3, fl))
a('s_barrier')
wo_own([1, 2, 3, 4])
flag_wait(3)
stamp('oflag1')
wo_gemm([1, 2, 3, 4], [])
stamp('wo1')
stats_and_router(1)
a('s_barrier')
for tt in range(1, 5): a(f'ds_read_b64 {v(vAb+2*tt,2)}, {v(vSQ)} offset:{tt*256 + 8}', 'ab')
sOb = sT[6]
a(f'''v_and_b32 {v(vT)}, 31, {v(vLane)}
v_lshlrev_b32 {v(vT)}, 11, {v(vT)}
v_lshrrev_b32 {v(vT+1)}, 5, {v(vLane)}
v_lshl_add_u32 {v(vT)}, {v(vT+1)}, 4, {v(vT)}
s_and_b32 s0, {sG}, 15
s_lshl_b32 s0, s0, 17
s_lshr_b32 s1, {sG}, 4
s_lshl_b32 s1, s1, 10
s_add_u32 s0, s0, s1
s_lshl_b32 s1, {sM}, 7
s_add_u32 {sOb}, s0, s1
s_lshl_b32 s1, {sW}, 5
s_add_u32 s0, {sOb}, s1
s_add_u32 s1, s0, 65536''')
a.wait(lg='ab')
res_update(vAb)
for tt in range(1, 5):
    for x in cvt2(vPK + 2*(tt-1), vRes + 4*tt): a(x)
pub_swap(2)
OUTF = opt('outf', '')
a(f'buffer_store_dwordx4 {v(vPK,4)}, {v(vT)}, {rOUT}, s0 offen {OUTF}')
a(f'buffer_store_dwordx4 {v(vPK+4,4)}, {v(vT)}, {rOUT}, s1 offen {OUTF}')
stamp('out')
a.track = False
a(f's_mov_b32 {sP}, 1\ns_waitcnt vmcnt(0)\ns_barrier')
a(f's_cmp_lt_i32 {sJ}, 0\ns_cbranch_scc0 L_ffn_a')
a(f's_cmp_eq_u32 {sW}, 0\ns_cbranch_scc0 L_done')
rg_wait(1)
a.label('L_ffn_done1')
stamp('ffn1')
a(f'''s_lshr_b32 s0, {sWI}, 6
s_cmp_eq_u32 s0, {sG}
s_cbranch_scc0 L_done
s_cmp_eq_u32 {sW}, 0
s_cbranch_scc0 L_done
s_and_b32 s1, {sWI}, 63
s_lshr_b32 {sTT}, s1, 4
s_add_u32 {sTT}, {sTT}, 1
s_and_b32 {sQQ}, s1, 15
s_lshl_b32 s1, s1, 11
s_add_u32 {sOb}, {sOb}, s1''')
xo = y_reduce(1)
a(f's_mov_b64 exec, 0xff00ff\nbuffer_store_dwordx2 {v(xo,2)}, {v(vT+2)}, {rOUT}, {sOb} offen {OUTF}\ns_mov_b64 exec, -1')
a.label('L_done')
if PROBE:
    stamp('end')
    a('s_waitcnt lgkmcnt(0)\ns_add_u32 s98, s98, 6000')
    a.label('L_probe')
    a('s_sleep 4\ns_memrealtime s[96:97]\ns_waitcnt lgkmcnt(0)\ns_sub_u32 s97, s96, s98\ns_cmp_lt_i32 s97, 0\ns_cbranch_scc1 L_probe')
if DEBUG:
    stamp('end')
    n = nstamp[0]
    a(f's_waitcnt lgkmcnt(0)\ns_lshl_b32 s0, s2, 2\ns_add_u32 s0, s0, {sW}\ns_lshl_b32 s0, s0, 6\ns_add_u32 s0, s0, {DBGS}\nv_mov_b32 {v(vT)}, 0')
    a(f'v_mov_b32 {v(vT+1)}, s98\nbuffer_store_dword {v(vT+1)}, {v(vT)}, {rWS}, s0 offen')
    for i in range(1, n):
        a(f's_sub_u32 s1, s{STAMP0+2*i}, s{STAMP0}\nv_mov_b32 {v(vT+1)}, s1\nbuffer_store_dword {v(vT+1)}, {v(vT)}, {rWS}, s0 offen offset:{4*i}')
a.label('L_end')
a('s_endpgm')
while cold: cold.pop(0)()

body = a.finish()
if DEBUG:
    z = '\n'.join(f'    s_mov_b32 s{STAMP0+2*i}, 0' for i in range(1, nstamp[0]))
    body = z + '\n' + body
ref = open(f'cdna_kernels/{NAME}.s.ref').read().split('\n')
hdr = [l for l in ref if l.startswith(';') and '@launch' not in l]
text = '\n'.join(hdr) + f'''
; @launch grid=(256,1,1) block=(256,1,1) lds=163840
.amdgcn_target "amdgcn-amd-amdhsa--gfx950"
.text
.globl {NAME}_kernel
.p2align 8
.type {NAME}_kernel,@function
{NAME}_kernel:
{body}
L_code_end:
; the code prefetch at entry reads up to this far
.fill ({32*CODE_LANES*128 + 512} - (L_code_end - {NAME}_kernel)) / 4, 4, 0xbf810000
.section .rodata,"a"
.p2align 6
.amdhsa_kernel {NAME}_kernel
  .amdhsa_next_free_vgpr 512
  .amdhsa_next_free_sgpr 102
  .amdhsa_accum_offset 256
  .amdhsa_group_segment_fixed_size 0
  .amdhsa_kernarg_size 88
  .amdhsa_user_sgpr_count 2
  .amdhsa_user_sgpr_kernarg_segment_ptr 1
  .amdhsa_system_sgpr_workgroup_id_x 1
.end_amdhsa_kernel
'''
open(OUT, 'w').write(text)
print('wrote', OUT, 'instructions', len(a.ins), 'nops added', a.nops, 'temps', NT, 'stamps', stamp.names)
```
